```python
import torch

def _softmax(x, axis=-1):
    return torch.softmax(x, dim=axis)
def _gelu(x):
    return torch.nn.functional.gelu(x, approximate="tanh")
def _silu(x):
    return torch.nn.functional.silu(x)
def _sigmoid(x):
    return torch.sigmoid(x)
def _layernorm(x, axis=-1, eps=1e-5):
    m = x.mean(dim=axis, keepdim=True)
    v = x.var(dim=axis, keepdim=True, unbiased=False)
    return (x - m) / torch.sqrt(v + eps)
def _scatter_add(tgt, idx, src, axis=0):
    return tgt.clone().index_add_(axis, idx, src)
def _segment_sum(src, seg, n):
    out = torch.zeros((n,) + src.shape[1:], dtype=src.dtype)
    return out.index_add_(0, seg, src)
def _pad(x, pw):
    flat = tuple(v for pair in reversed(pw) for v in pair)
    return torch.nn.functional.pad(x, flat)

kernel_name = 'recurrent_scan__ssm_conv_s5__swiglu_ffn__prompt'

def setup_inputs():

    _w = (lambda a: (lambda t: t.to(torch.bfloat16) if t.is_floating_point() else t)(torch.as_tensor(a)))
    def _A_setup():
        B, S, D = 1, 2048, 448
        P = D
        Lambda_re = -0.5 * (lambda _x: torch.exp(torch.as_tensor(_x)))((lambda *s: torch.randn(*s, dtype=torch.bfloat16) * 0.2)(P))
        Lambda_im = (lambda *s: torch.randn(*s, dtype=torch.bfloat16) * 0.4)(P) * 1.0
        B_re = (lambda *s: torch.randn(*s, dtype=torch.bfloat16) * 0.2)(P, D) * (D ** -0.5)
        B_im = (lambda *s: torch.randn(*s, dtype=torch.bfloat16) * 0.2)(P, D) * (D ** -0.5)
        C_re = (lambda *s: torch.randn(*s, dtype=torch.bfloat16) * 0.2)(D, P) * (P ** -0.5)
        C_im = (lambda *s: torch.randn(*s, dtype=torch.bfloat16) * 0.2)(D, P) * (P ** -0.5)
        log_dt = (lambda *s: torch.randn(*s, dtype=torch.bfloat16) * 0.2)(P) * 0.3 - 2.0
        Dskip = (lambda *s: torch.randn(*s, dtype=torch.bfloat16) * 0.05)(D)
        return {
            "x": _w((lambda *s: torch.randn(*s, dtype=torch.bfloat16) * 0.05)(B, S, D)),
            "Lambda_re": _w(Lambda_re),
            "Lambda_im": _w(Lambda_im),
            "B_re": _w(B_re),
            "B_im": _w(B_im),
            "C_re": _w(C_re),
            "C_im": _w(C_im),
            "log_dt": _w(log_dt),
            "Dskip": _w(Dskip),
        }
    _A_in = _A_setup()

    def _B_setup():
        B, S, D, F = 1, 2048, 448, 1792
        return {
            "x": _w((lambda *s: torch.randn(*s, dtype=torch.bfloat16) * 0.05)(B, S, D)),
            "w_gate": _w((lambda *s: torch.randn(*s, dtype=torch.bfloat16) * 0.05)(D, F)),
            "w_up": _w((lambda *s: torch.randn(*s, dtype=torch.bfloat16) * 0.05)(D, F)),
            "w_down": _w((lambda *s: torch.randn(*s, dtype=torch.bfloat16) * 0.05)(F, D)),
        }
    _B_in = _B_setup()

    return {
        "A_x": _A_in["x"],
        "A_Lambda_re": _A_in["Lambda_re"],
        "A_Lambda_im": _A_in["Lambda_im"],
        "A_B_re": _A_in["B_re"],
        "A_B_im": _A_in["B_im"],
        "A_C_re": _A_in["C_re"],
        "A_C_im": _A_in["C_im"],
        "A_log_dt": _A_in["log_dt"],
        "A_Dskip": _A_in["Dskip"],
        "B_x": _B_in["x"],
        "B_w_gate": _B_in["w_gate"],
        "B_w_up": _B_in["w_up"],
        "B_w_down": _B_in["w_down"],
    }

def reference(A_x, A_Lambda_re, A_Lambda_im, A_B_re, A_B_im, A_C_re, A_C_im, A_log_dt, A_Dskip, B_x, B_w_gate, B_w_up, B_w_down):
    def _A_ref(x, Lambda_re, Lambda_im, B_re, B_im, C_re, C_im, log_dt, Dskip):
        Bsz, L, H = x.shape
        Lam = Lambda_re + 1j * Lambda_im
        Bmat = B_re + 1j * B_im
        Cmat = C_re + 1j * C_im
        dt = torch.exp(log_dt)
        Lam_bar = torch.exp(dt * Lam)
        B_bar = ((Lam_bar - 1.0) / Lam)[:, None] * Bmat
        Bu = torch.einsum("bld,pd->blp", x + 0j, B_bar)
        h = torch.zeros_like(Bu[:, 0, :])
        hs = []
        for t in range(L):
            h = Lam_bar[None, :] * h + Bu[:, t, :]
            hs.append(h)
        hseq = torch.stack(hs, 1)
        y = 2.0 * torch.einsum("blp,dp->bld", hseq, Cmat).real + x * Dskip[None, None, :]
        return y

    def _B_ref(x, w_gate, w_up, w_down):
        g = _silu(x @ w_gate)
        u = x @ w_up
        return (g * u) @ w_down

    x = A_x
    xn = _layernorm(x, axis=-1)
    s = _A_ref(xn, A_Lambda_re, A_Lambda_im, A_B_re, A_B_im, A_C_re, A_C_im, A_log_dt, A_Dskip)
    g = _silu(_B_ref(xn, B_w_gate, B_w_up, B_w_down))
    return x + s * g
```

```python
import re
TRANS = ("v_exp_f32","v_log_f32","v_rcp_f32","v_rsq_f32","v_sqrt_f32","v_sin_f32","v_cos_f32","v_rcp_iflag_f32")
def is_trans(op): return re.sub(r'_e(32|64)$','',op) in TRANS
def regs_of(tok):
    out=[]
    tok=tok.strip()
    for m in re.finditer(r'(?<![\w])([vsa])\[(\d+):(\d+)\]|(?<![\w\[])([vsa])(\d+)(?![\w:\]])|(\bvcc\b)|(\bexec\b)|(\bm0\b)', tok):
        if m.group(1):
            for n in range(int(m.group(2)), int(m.group(3))+1): out.append((m.group(1),n))
        elif m.group(4): out.append((m.group(4), int(m.group(5))))
        elif m.group(6): out += [('s',106),('s',107)]
        elif m.group(7): out += [('s',126),('s',127)]
        elif m.group(8): out.append(('s',124))
    return out

class Asm:
    def __init__(self):
        self.L=[]; self.n=0
        self.valu_w={}
        self.trans_w={}
        self.mfma_w={}
        self.mfma_c={}
        self.store_r={}
        self.salu_m0=-100
        self.vm=[]; self.lg=[]
        self.maxv=0; self.maxs=0
        self.auto=True
    def raw(self,s): self.L.append(s)
    def comment(self,s): self.L.append("    ; "+s)
    def label(self,l):
        self.L.append(l+":")
    def nop(self,k):
        while k>0:
            c=min(k,16); self.L.append(f"    s_nop {c-1}"); self.n+=c; k-=c
    def __call__(self,line):
        line=line.strip()
        code=line.split(';')[0].strip()
        parts=code.split(None,1)
        op=parts[0]; rest=parts[1] if len(parts)>1 else ""
        ops=[o.strip() for o in re.split(r',(?![^\[]*\])', rest)] if rest else []
        allr=[regs_of(o) for o in ops]
        for rl in allr:
            for k,n in rl:
                if k=='v': self.maxv=max(self.maxv,n)
                if k=='s' and n<102: self.maxs=max(self.maxs,n)
        is_mfma=op.startswith("v_mfma")
        is_valu=op.startswith("v_") and not is_mfma
        is_vmem=op.startswith(("buffer_","global_","flat_"))
        is_ds=op.startswith("ds_")
        is_salu=op.startswith("s_")
        dst=[];src=[]
        if is_mfma:
            dst=allr[0]; src=allr[1]+allr[2]+allr[3]
        elif is_valu:
            if op.startswith(("v_permlane16_swap","v_permlane32_swap","v_swap")):
                dst=allr[0]+allr[1]; src=dst
            elif op.startswith("v_cmp"):
                dst=allr[0]; src=sum(allr[1:],[])
            elif op.startswith(("v_add_co","v_sub_co","v_addc_co","v_subb_co","v_div_scale")):
                dst=allr[0]+allr[1]; src=sum(allr[2:],[])
            else:
                dst=allr[0]; src=sum(allr[1:],[])
                if op.startswith(("v_fmac","v_dot2c","v_pk_fmac")): src=src+dst
                if op.startswith("v_cndmask") and len(ops)==3: src+= [('s',106),('s',107)]
        elif is_vmem or is_ds:
            isload = ("load" in op or "read" in op or "bpermute" in op or "swizzle" in op) and not re.search(r'\blds\b', rest) and "load_lds" not in op
            if "atomic" in op and "sc0" in rest: isload=False
            if isload: dst=allr[0]; src=sum(allr[1:],[])
            else: src=sum(allr,[])
        else:
            if allr and not op.startswith(("s_cmp","s_cbranch","s_branch","s_waitcnt","s_barrier","s_nop","s_endpgm","s_sleep","s_setprio","s_bitcmp")):
                dst=allr[0]; src=sum(allr[1:],[])
            else: src=sum(allr,[])
        need=0
        def req(slot,ws):
            nonlocal need
            need=max(need, ws-(self.n-slot-1))
        if self.auto:
            tbl_rd={2:5,4:8,8:12,16:20}
            for r in src:
                if r[0] in 'va':
                    if is_mfma and r in self.valu_w: req(self.valu_w[r],2)
                    if is_valu and r in self.trans_w and not is_trans(op): req(self.trans_w[r],1)
                    if (is_vmem or is_ds) and r in self.trans_w: req(self.trans_w[r],1)
                    if is_mfma and r in self.trans_w: req(self.trans_w[r],2)
                    if is_valu and ("permlane" in op) and r in self.valu_w: req(self.valu_w[r],2)
                    if is_valu and ("dpp" in line or "quad_perm" in line or "row_" in line) and r in self.valu_w: req(self.valu_w[r],2)
                    if op.startswith(("v_readfirstlane","v_readlane")) and r in self.valu_w: req(self.valu_w[r],1)
                    if r in self.mfma_w:
                        sl,p=self.mfma_w[r]
                        if is_mfma:
                            if r in allr[3] and allr[3]==allr[0] and self.mfma_w.get(allr[0][0],(0,0))[0]==sl: pass
                            elif r in allr[3]: req(sl,{2:4,4:6,8:10,16:18}[p])
                            else: req(sl,tbl_rd[p])
                        else: req(sl,tbl_rd[p])
                if r[0]=='s':
                    if r in self.valu_w:
                        if is_vmem: req(self.valu_w[r],5)
                        elif is_valu: req(self.valu_w[r],2)
                        elif is_salu: req(self.valu_w[r],1)
            for r in dst:
                if r[0] in 'va':
                    if r in self.mfma_w and not is_mfma:
                        sl,p=self.mfma_w[r]; req(sl,tbl_rd[p])
                    if is_valu and r in self.mfma_c:
                        sl,p=self.mfma_c[r]; req(sl,{2:1,4:3,8:7,16:15}[p])
                    if r in self.store_r: req(self.store_r[r],2)
            if is_vmem and (re.search(r'\blds\b', rest) or "load_lds" in op): req(self.salu_m0,1)
            if need>0: self.nop(need)
        self.L.append("    "+line)
        slot=self.n; self.n+=1
        if op=="s_nop": self.n+=int(ops[0],0)
        if is_valu:
            for r in dst:
                self.valu_w[r]=slot
                if is_trans(op): self.trans_w[r]=slot
                else: self.trans_w.pop(r,None)
                self.mfma_w.pop(r,None)
        elif is_mfma:
            p = 8 if "32x32x16" in op else 4
            for r in dst: self.mfma_w[r]=(slot,p); self.valu_w.pop(r,None); self.trans_w.pop(r,None)
            for r in allr[3]: self.mfma_c[r]=(slot,p)
        else:
            for r in dst:
                self.valu_w.pop(r,None); self.trans_w.pop(r,None); self.mfma_w.pop(r,None)
                if r==('s',124): self.salu_m0=slot
        if is_vmem and "store" in op and ("x4" in op or "x3" in op):
            for r in allr[0]: self.store_r[r]=slot
    def vm_issue(self,tag): self.vm.append(tag)
    def vm_wait(self,tags):
        if not isinstance(tags,(list,set)): tags=[tags]
        idx=[i for i,t in enumerate(self.vm) if t in tags]
        if not idx: return
        k=len(self.vm)-1-max(idx)
        assert k<=63
        if getattr(self,'strict',False): k=0; idx=[len(self.vm)-1]
        self(f"s_waitcnt vmcnt({k})")
        self.vm=self.vm[max(idx)+1:]
    def vm_all(self):
        self("s_waitcnt vmcnt(0)"); self.vm=[]
    def lg_issue(self,tag): self.lg.append(tag)
    def lg_wait(self,tags):
        if not isinstance(tags,(list,set)): tags=[tags]
        idx=[i for i,t in enumerate(self.lg) if t in tags]
        if not idx: return
        k=len(self.lg)-1-max(idx)
        k=min(k,15)
        self(f"s_waitcnt lgkmcnt({k})")
        self.lg=self.lg[len(self.lg)-k:] if k>0 else []
    def lg_all(self):
        self("s_waitcnt lgkmcnt(0)"); self.lg=[]
    def text(self): return "\n".join(self.L)+"\n"
def vr(b,n=1): return f"v{b}" if n==1 else f"v[{b}:{b+n-1}]"
def sr(b,n=1): return f"s{b}" if n==1 else f"s[{b}:{b+n-1}]"
```

```python
import sys
from asmlib import *

NAME="recurrent_scan__ssm_conv_s5__swiglu_ffn__prompt"
XN_OFF=0
A_OFF=2<<20
H_OFF=10<<20
T_OFF=14<<20
WS_SIZE=16<<20
LOG2E=0x3fb8aa3b
NLOG2E=0xbfb8aa3b
INV2PI=0x3e22f983

def srd(a, d, lo, hi, size):
    a(f"s_mov_b32 s{d}, s{lo}")
    a(f"s_and_b32 s{d+1}, s{hi}, 0xffff")
    a(f"s_mov_b32 s{d+2}, {size}")
    a(f"s_mov_b32 s{d+3}, 0x20000")

def kd(name, vgpr, sgpr=102):
    acc=(vgpr+3)//4*4
    return f""".p2align 6
.amdhsa_kernel {name}
  .amdhsa_next_free_vgpr {vgpr}
  .amdhsa_next_free_sgpr {sgpr}
  .amdhsa_accum_offset {acc}
  .amdhsa_group_segment_fixed_size 0
  .amdhsa_kernarg_size 128
  .amdhsa_user_sgpr_count 2
  .amdhsa_user_sgpr_kernarg_segment_ptr 1
  .amdhsa_system_sgpr_workgroup_id_x 1
  .amdhsa_float_denorm_mode_32 3
.end_amdhsa_kernel
"""

def head(a,name):
    a.raw(f".globl {name}\n.p2align 8\n.type {name},@function\n{name}:")

def tau_inv(a, dst, t, tmp):
    a(f"v_and_b32 v{dst}, 3, v{t}")
    a(f"v_bfe_u32 v{tmp}, v{t}, 2, 2")
    a(f"v_lshl_or_b32 v{dst}, v{tmp}, 3, v{dst}")
    a(f"v_bfe_u32 v{tmp}, v{t}, 4, 1")
    a(f"v_lshl_or_b32 v{dst}, v{tmp}, 2, v{dst}")
def tau(a, dst, r, tmp):
    a(f"v_and_b32 v{dst}, 3, v{r}")
    a(f"v_bfe_u32 v{tmp}, v{r}, 3, 2")
    a(f"v_lshl_or_b32 v{dst}, v{tmp}, 2, v{dst}")
    a(f"v_bfe_u32 v{tmp}, v{r}, 2, 1")
    a(f"v_lshl_or_b32 v{dst}, v{tmp}, 4, v{dst}")

def allreduce32(a, v, t):
    a(f"v_add_f32_dpp v{v}, v{v}, v{v} quad_perm:[1,0,3,2] row_mask:0xf bank_mask:0xf")
    a(f"v_add_f32_dpp v{v}, v{v}, v{v} quad_perm:[2,3,0,1] row_mask:0xf bank_mask:0xf")
    a(f"v_add_f32_dpp v{v}, v{v}, v{v} row_half_mirror row_mask:0xf bank_mask:0xf")
    a(f"v_add_f32_dpp v{v}, v{v}, v{v} row_mirror row_mask:0xf bank_mask:0xf")
    a(f"v_mov_b32 v{t}, v{v}")
    a(f"v_permlane16_swap_b32 v{v}, v{t}")
    a(f"v_add_f32 v{v}, v{v}, v{t}")

def gen_k0():
    a=Asm(); head(a,"k0_kernel")
    a("s_cmp_ge_u32 s2, 256"); a("s_cbranch_scc1 K0_END")
    a("s_load_dwordx2 s[4:5], s[0:1], 0")
    a("s_load_dwordx2 s[6:7], s[0:1], 120")
    a("v_and_b32 v1, 63, v0")
    a("v_lshrrev_b32 v2, 5, v0")
    a("s_lshl_b32 s3, s2, 3")
    a("v_add_u32 v2, s3, v2")
    a("v_and_b32 v3, 31, v0")
    a("s_movk_i32 s16, 896")
    a("v_mul_lo_u32 v4, v2, s16")
    a("v_lshl_add_u32 v4, v3, 4, v4")
    for i in range(8): a(f"v_mov_b32 v{10+i}, 0")
    a("s_waitcnt lgkmcnt(0)")
    srd(a,8,4,5,2048*896); srd(a,12,6,7,WS_SIZE)
    a("v_cmp_gt_u32 vcc, 28, v3")
    a("s_and_saveexec_b64 s[18:19], vcc")
    a("buffer_load_dwordx4 v[10:13], v4, s[8:11], 0 offen")
    a("buffer_load_dwordx4 v[14:17], v4, s[8:11], 0 offen offset:448")
    a("s_mov_b64 s[20:21], exec")
    a("s_mov_b64 exec, s[18:19]")
    a("s_cmp_ge_u32 s2, 28"); a("s_cbranch_scc1 K0_NOZ")
    a("s_lshl_b32 s3, s2, 12")
    a(f"s_add_u32 s3, s3, {T_OFF}")
    a("v_lshlrev_b32 v5, 4, v0")
    for i in range(4): a(f"v_mov_b32 v{40+i}, 0")
    a("buffer_store_dwordx4 v[40:43], v5, s[12:15], s3 offen")
    a.label("K0_NOZ")
    a("v_and_b32 v5, 31, v2")
    tau_inv(a,6,5,7)
    a("v_and_b32 v7, 0x60, v2")
    a("v_or_b32 v6, v6, v7")
    a("v_lshrrev_b32 v7, 7, v2")
    a("v_mul_u32_u24 v7, 7, v7")
    a("v_bfe_u32 v8, v6, 1, 3")
    for k,(jr) in enumerate((0,28)):
        a(f"v_add_u32 v9, {jr}, v3")
        a(f"v_lshrrev_b32 v18, 3, v9")
        a(f"v_add_u32 v18, v18, v7")
        a(f"v_lshl_add_u32 v18, v18, 7, v6")
        a(f"v_and_b32 v9, 7, v9")
        a(f"v_xor_b32 v9, v9, v8")
        a(f"v_lshlrev_b32 v9, 4, v9")
        a(f"v_lshl_add_u32 v{44+k}, v18, 7, v9")
    a("s_waitcnt vmcnt(0)")
    for i in range(8):
        a(f"v_lshlrev_b32 v{20+2*i}, 16, v{10+i}")
        a(f"v_and_b32 v{21+2*i}, 0xffff0000, v{10+i}")
    a("v_add_f32 v36, v20, v21"); a("v_add_f32 v37, v22, v23")
    for i in range(2,8,2):
        a(f"v_add_f32 v36, v36, v{20+2*i}"); a(f"v_add_f32 v37, v37, v{22+2*i}")
        a(f"v_add_f32 v36, v36, v{21+2*i}"); a(f"v_add_f32 v37, v37, v{23+2*i}")
    a("v_add_f32 v36, v36, v37")
    allreduce32(a,36,37)
    a("v_mul_f32 v36, 0x3b124925, v36")
    a("v_mov_b32 v38, 0"); a("v_mov_b32 v39, 0")
    a("s_mov_b64 exec, s[20:21]")
    for i in range(16):
        a(f"v_sub_f32 v37, v{20+i}, v36")
        a(f"v_fmac_f32 v{38+(i&1)}, v37, v37")
    a("s_mov_b64 exec, s[18:19]")
    a("v_add_f32 v38, v38, v39")
    allreduce32(a,38,37)
    a("v_mul_f32 v38, 0x3b124925, v38")
    a("v_cvt_pk_bf16_f32 v36, 0, v36")
    a("v_cvt_pk_bf16_f32 v38, 0, v38")
    a("v_add_f32 v38, 0x3727c5ac, v38")
    a("v_cvt_pk_bf16_f32 v38, 0, v38")
    a("v_sqrt_f32 v38, v38")
    a("v_cvt_pk_bf16_f32 v38, 0, v38")
    a("v_rcp_f32 v39, v38")
    for i in range(16):
        r=20+i
        a(f"v_sub_f32 v{r}, v{r}, v36")
        a(f"v_cvt_pk_bf16_f32 v{r}, 0, v{r}")
        a(f"v_mul_f32 v37, v{r}, v39")
        a(f"v_fma_f32 v{r}, -v37, v38, v{r}")
        a(f"v_fma_f32 v{r}, v{r}, v39, v37")
    for i in range(8):
        a(f"v_cvt_pk_bf16_f32 v{10+i}, v{20+2*i}, v{21+2*i}")
    a("s_mov_b64 exec, s[20:21]")
    a("buffer_store_dwordx4 v[10:13], v44, s[12:15], 0 offen")
    a("buffer_store_dwordx4 v[14:17], v45, s[12:15], 0 offen")
    a.label("K0_END"); a("s_endpgm")
    return a, 48

XS=0; BS=49152; WSL=73728; SCR=155648
def gen_k1():
    a=Asm(); head(a,"k1_kernel")
    a("s_cmp_ge_u32 s2, 224"); a("s_cbranch_scc1 K1_END")
    a("s_load_dwordx16 s[16:31], s[0:1], 0")
    a("s_load_dwordx16 s[32:47], s[0:1], 64")
    a("s_and_b32 s3, s2, 7"); a("s_lshr_b32 s4, s2, 3")
    a("s_lshr_b32 s5, s3, 1"); a("s_lshl_b32 s5, s5, 2"); a("s_and_b32 s6, s4, 3"); a("s_add_u32 s64, s5, s6")
    a("s_and_b32 s5, s3, 1"); a("s_mul_i32 s5, s5, 7"); a("s_lshr_b32 s6, s4, 2"); a("s_add_u32 s65, s5, s6")
    a("v_lshrrev_b32 v2, 6, v0")
    a("v_and_b32 v1, 63, v0")
    a("v_readfirstlane_b32 s66, v2")
    a("s_and_b32 s67, s66, 1")
    a("s_lshr_b32 s68, s66, 1")
    a("s_lshr_b32 s69, s68, 1")
    a("s_and_b32 s70, s68, 1")
    a("s_lshl_b32 s71, s67, 1"); a("s_add_u32 s71, s71, s70")
    a("s_xor_b32 s72, s71, 1")
    LANE=1
    vX0=2; vX1=6; vB=10; vW=14; vW2=15; oX=16; oB=17; oW=18
    vseg=19; lr,li,cr,ci,l8r,l8i,lcr,lci,pwr,pwi=range(20,30)
    t0,t1,t2,t3=30,31,152,153
    FR=[32,52]
    aG=[72,88]; aU=[104,120]; aS=136
    a(f"v_and_b32 v{t0}, 15, v{LANE}")
    a("s_lshl_b32 s3, s65, 5"); a("s_lshl_b32 s4, s69, 4"); a("s_add_u32 s3, s3, s4")
    a(f"v_add_u32 v{t0}, s3, v{t0}")
    a(f"v_lshlrev_b32 v{t0}, 1, v{t0}")
    a("s_waitcnt lgkmcnt(0)")
    a(f"global_load_ushort v154, v{t0}, s[18:19]"); a.vm_issue("p")
    a(f"global_load_ushort v155, v{t0}, s[20:21]"); a.vm_issue("p")
    a(f"global_load_ushort v156, v{t0}, s[30:31]"); a.vm_issue("p")
    srd(a,48,36,37,448*3584); srd(a,52,38,39,448*3584); srd(a,60,46,47,WS_SIZE)
    a("s_and_b32 s3, s66, 2"); a("s_cmp_eq_u32 s3, 0")
    a("s_cselect_b32 s56, s22, s24"); a("s_cselect_b32 s57, s23, s25")
    a("s_and_b32 s57, s57, 0xffff"); a(f"s_mov_b32 s58, {448*896}"); a("s_mov_b32 s59, 0x20000")
    a("s_lshl_b32 s3, s66, 11")
    a(f"v_lshlrev_b32 v{oX}, 4, v{LANE}")
    a(f"v_add_u32 v{oX}, s3, v{oX}")
    a(f"v_lshrrev_b32 v{t0}, 3, v{LANE}")
    a("s_lshl_b32 s3, s66, 3")
    a(f"v_add_u32 v{t1}, s3, v{t0}")
    a(f"v_bfe_u32 v{t1}, v{t1}, 1, 3")
    a(f"v_and_b32 v{t2}, 7, v{LANE}")
    a(f"v_xor_b32 v{t1}, v{t1}, v{t2}")
    a("s_lshl_b32 s3, s65, 5"); a("s_lshr_b32 s4, s66, 2"); a("s_lshl_b32 s4, s4, 4"); a("s_add_u32 s3, s3, s4")
    a("s_lshl_b32 s4, s67, 3"); a("s_add_u32 s3, s3, s4")
    a(f"v_add_u32 v{t0}, s3, v{t0}")
    a("s_movk_i32 s4, 896")
    a(f"v_mul_lo_u32 v{t0}, v{t0}, s4")
    a(f"v_lshl_add_u32 v{oB}, v{t1}, 4, v{t0}")
    a(f"v_lshrrev_b32 v{t0}, 4, v{LANE}")
    a(f"v_and_b32 v{t1}, 15, v{LANE}")
    a(f"v_lshlrev_b32 v{t2}, 2, v{t0}")
    a(f"v_xor_b32 v{t1}, v{t1}, v{t2}")
    a("s_lshl_b32 s3, s66, 2")
    a(f"v_add_u32 v{t0}, s3, v{t0}")
    a("s_movk_i32 s4, 3584")
    a(f"v_mul_lo_u32 v{t0}, v{t0}, s4")
    a(f"v_lshl_add_u32 v{oW}, v{t1}, 4, v{t0}")
    a("s_lshl_b32 s3, s65, 8")
    a(f"v_add_u32 v{oW}, s3, v{oW}")
    a("s_mul_i32 s73, s64, 7"); a("s_lshl_b32 s73, s73, 14")
    a("s_lshl_b32 s74, s66, 11")
    a("s_lshl_b32 s75, s66, 10")
    def dma_xb(J):
        slot=J%3
        a(f"s_add_u32 m0, s74, {XS+slot*16384}")
        a(f"s_add_u32 s76, s73, {J*16384}")
        a(f"buffer_load_dwordx4 v{oX}, s[60:63], s76 offen lds"); a.vm_issue(("x",J))
        a(f"buffer_load_dwordx4 v{oX}, s[60:63], s76 offen offset:1024 lds"); a.vm_issue(("x",J))
        a(f"s_add_u32 m0, s75, {BS+slot*8192}")
        a(f"s_movk_i32 s76, {J*128}")
        a(f"buffer_load_dwordx4 v{oB}, s[56:59], s76 offen lds"); a.vm_issue(("x",J))
    def dma_w(i):
        slot=i%5
        a(f"s_add_u32 m0, s75, {WSL+slot*16384}")
        a(f"s_mov_b32 s77, {i*32*3584}")
        a(f"buffer_load_dwordx4 v{oW}, s[48:51], s77 offen lds"); a.vm_issue(("w",i))
        a(f"s_add_u32 m0, s75, {WSL+slot*16384+8192}")
        a(f"buffer_load_dwordx4 v{oW}, s[52:55], s77 offen lds"); a.vm_issue(("w",i))
    dma_xb(0); dma_w(0); dma_w(1); dma_xb(1); dma_w(2); dma_w(3); dma_xb(2); dma_w(4)
    a(f"v_and_b32 v{t0}, 31, v{LANE}")
    a(f"v_lshrrev_b32 v{t1}, 5, v{LANE}")
    a(f"v_bfe_u32 v{t2}, v{t0}, 1, 3")
    a(f"v_xor_b32 v{t2}, v{t2}, v{t1}")
    a(f"v_lshlrev_b32 v{t2}, 4, v{t2}")
    a(f"v_lshl_add_u32 v{t2}, v{t0}, 7, v{t2}")
    a("s_lshl_b32 s3, s71, 12"); a("s_lshl_b32 s4, s72, 12"); a("s_lshl_b32 s5, s69, 12"); a(f"s_add_u32 s5, s5, {BS}")
    for ks in range(4):
        a(f"v_xor_b32 v{t3}, {ks*32}, v{t2}")
        a(f"v_add_u32 v{vX0+ks}, s3, v{t3}")
        a(f"v_add_u32 v{vX1+ks}, s4, v{t3}")
        a(f"v_add_u32 v{vB+ks}, s5, v{t3}")
    a(f"v_bfe_u32 v{t0}, v{LANE}, 2, 2")
    a(f"v_lshl_add_u32 v{t2}, v{t1}, 3, v{t0}")
    a(f"v_lshlrev_b32 v{t2}, 8, v{t2}")
    a(f"v_xor_b32 v{t0}, s68, v{t0}")
    a(f"v_lshl_add_u32 v{t2}, v{t0}, 6, v{t2}")
    a(f"v_bfe_u32 v{t0}, v{LANE}, 4, 1")
    a(f"v_lshl_add_u32 v{t2}, v{t0}, 5, v{t2}")
    a(f"v_and_b32 v{t0}, 3, v{LANE}")
    a(f"v_lshl_add_u32 v{t2}, v{t0}, 3, v{t2}")
    a(f"v_add_u32 v{vW}, {WSL}, v{t2}")
    a(f"v_add_u32 v{vW2}, {WSL+65536}, v{t2}")
    a.vm_wait("p")
    a("v_lshlrev_b32 v154, 16, v154"); a("v_lshlrev_b32 v155, 16, v155"); a("v_lshlrev_b32 v156, 16, v156")
    a(f"v_mul_f32 v156, {LOG2E}, v156")
    a("v_exp_f32 v156, v156")
    a("v_cvt_pk_bf16_f32 v156, 0, v156")
    a("v_mul_f32 v157, v156, v154")
    a(f"v_mul_f32 v157, {LOG2E}, v157")
    a("v_mul_f32 v158, v156, v155")
    a(f"v_mul_f32 v158, {INV2PI}, v158")
    def cpow(dr,di,n):
        a(f"v_mul_f32 v159, {n}, v157")
        a(f"v_mul_f32 v160, {n}, v158")
        a(f"v_exp_f32 v159, v159")
        a(f"v_rndne_f32 v161, v160")
        a(f"v_sub_f32 v160, v160, v161")
        a(f"v_cos_f32 v{dr}, v160")
        a(f"v_sin_f32 v{di}, v160")
        a(f"v_mul_f32 v{dr}, v{dr}, v159")
        a(f"v_mul_f32 v{di}, v{di}, v159")
    cpow(lr,li,"1.0"); cpow(l8r,l8i,"0x41000000"); cpow(lcr,lci,"0x43000000")
    a(f"v_lshrrev_b32 v{vseg}, 4, v{LANE}")
    a("s_lshl_b32 s3, s71, 2")
    a(f"v_add_u32 v{vseg}, s3, v{vseg}")
    a(f"v_lshlrev_b32 v162, 3, v{vseg}")
    a(f"v_cvt_f32_u32 v162, v162")
    cpow(pwr,pwi,"v162")
    a(f"v_add_f32 v159, -1.0, v{lr}")
    a("v_mul_f32 v160, v154, v154")
    a("v_fmac_f32 v160, v155, v155")
    a("v_rcp_f32 v160, v160")
    a("v_add_f32 v160, v160, v160")
    a("v_mul_f32 v161, v159, v154")
    a(f"v_fmac_f32 v161, v{li}, v155")
    a(f"v_mul_f32 v{cr}, v161, v160")
    a(f"v_mul_f32 v161, v{li}, v154")
    a(f"v_fma_f32 v161, -v159, v155, v161")
    a(f"v_mul_f32 v{ci}, v161, v160")

    def reads(s):
        F=FR[s&1]; i=s//2; J=s//4; ks=s%4; k2=s%2
        xs=(J%3)*16384; bs=(J%3)*8192; slot=i%5
        wb=vW if slot<4 else vW2
        wo=(slot%4)*16384+k2*4096
        a(f"ds_read_b64_tr_b16 v[{F+8}:{F+9}], v{wb} offset:{wo}"); a.lg_issue(s)
        a(f"ds_read_b64_tr_b16 v[{F+10}:{F+11}], v{wb} offset:{wo+1024}"); a.lg_issue(s)
        a(f"ds_read_b128 v[{F}:{F+3}], v{vX0+ks} offset:{xs}"); a.lg_issue(s)
        a(f"ds_read_b128 v[{F+4}:{F+7}], v{vX1+ks} offset:{xs}"); a.lg_issue(s)
        a(f"ds_read_b64_tr_b16 v[{F+12}:{F+13}], v{wb} offset:{wo+8192}"); a.lg_issue(s)
        a(f"ds_read_b64_tr_b16 v[{F+14}:{F+15}], v{wb} offset:{wo+8192+1024}"); a.lg_issue(s)
        a(f"ds_read_b128 v[{F+16}:{F+19}], v{vB+ks} offset:{bs}"); a.lg_issue(s)
    def mf(d,A,B,s):
        c = "0" if s==0 else f"v[{d}:{d+15}]"
        a(f"v_mfma_f32_32x32x16_bf16 v[{d}:{d+15}], v[{A}:{A+3}], v[{B}:{B+3}], {c}")
    a.vm_wait([("x",0),("w",0)])
    a("s_barrier")
    reads(0)
    for s in range(28):
        F=FR[s&1]; i=s//2
        a.lg_wait(s)
        if s==27:
            mf(aS,F,F+16,s)
        mf(aG[0],F+8,F,s); mf(aG[1],F+8,F+4,s)
        if s%2==1 and i<13:
            need=[("w",i+1)]
            if (i+1)%2==0: need.append(("x",(i+1)//2))
            a.vm_wait(need)
            a("s_barrier")
        if s<27: reads(s+1)
        mf(aU[0],F+12,F,s)
        if s%2==1 and i<13:
            if i>=1 and i+4<=13: dma_w(i+4)
        mf(aU[1],F+12,F+4,s)
        if s%2==1 and i<13:
            if i%2==0 and i>=2 and i//2+2<=6: dma_xb(i//2+2)
        if s<27: mf(aS,F,F+16,s)
    re=[aS+j for j in range(8)]; im=[aS+8+j for j in range(8)]
    for j in range(8): a(f"v_permlane16_swap_b32 v{re[j]}, v{im[j]}")
    BU=32
    bur=[BU+j for j in range(8)]; bui=[BU+8+j for j in range(8)]
    for j in range(8):
        a(f"v_mul_f32 v{bur[j]}, v{cr}, v{re[j]}")
        a(f"v_mul_f32 v{bui[j]}, v{cr}, v{im[j]}")
        a(f"v_fma_f32 v{bur[j]}, -v{ci}, v{im[j]}, v{bur[j]}")
        a(f"v_fmac_f32 v{bui[j]}, v{ci}, v{re[j]}")
    hA=(48,49); hB=(50,51)
    cur=(bur[0],bui[0])
    for j in range(1,8):
        n = hA if j%2 else hB
        a(f"v_fma_f32 v{n[0]}, v{lr}, v{cur[0]}, v{bur[j]}")
        a(f"v_fma_f32 v{n[1]}, v{lr}, v{cur[1]}, v{bui[j]}")
        a(f"v_fma_f32 v{n[0]}, -v{li}, v{cur[1]}, v{n[0]}")
        a(f"v_fmac_f32 v{n[1]}, v{li}, v{cur[0]}")
        cur=n
    assert cur==hA
    a(f"v_and_b32 v{t0}, 15, v{LANE}")
    a("s_lshl_b32 s3, s69, 7"); a(f"s_add_u32 s3, s3, {SCR}")
    a(f"v_lshlrev_b32 v{t0}, 3, v{t0}")
    a(f"v_add_u32 v{t0}, s3, v{t0}")
    a(f"v_lshl_add_u32 v{t1}, v{vseg}, 8, v{t0}")
    a(f"ds_write_b64 v{t1}, v[{hA[0]}:{hA[1]}]")
    a("s_waitcnt lgkmcnt(0)")
    a("s_barrier")
    E=152
    for sp in range(16):
        a(f"ds_read_b64 v[{E+2*sp}:{E+2*sp+1}], v{t0} offset:{sp*256}"); a.lg_issue(("e",sp))
    c0r,c0i=52,53
    a(f"v_mov_b32 v{c0r}, 0"); a(f"v_mov_b32 v{c0i}, 0")
    a.lg_wait(("e",0))
    cur=(E,E+1)
    for sp in range(1,16):
        a(f"v_cmp_eq_u32 vcc, {sp}, v{vseg}")
        a.lg_wait(("e",sp))
        n=(E+2*sp,E+2*sp+1)
        a(f"v_fmac_f32 v{n[0]}, v{l8r}, v{cur[0]}")
        a(f"v_fmac_f32 v{n[1]}, v{l8r}, v{cur[1]}")
        a(f"v_cndmask_b32 v{c0r}, v{c0r}, v{cur[0]}, vcc")
        a(f"v_cndmask_b32 v{c0i}, v{c0i}, v{cur[1]}, vcc")
        a(f"v_fma_f32 v{n[0]}, -v{l8i}, v{cur[1]}, v{n[0]}")
        a(f"v_fmac_f32 v{n[1]}, v{l8i}, v{cur[0]}")
        cur=n
    a("s_mul_i32 s78, s65, 16"); a("s_lshl_b32 s78, s78, 9"); a(f"s_add_u32 s78, s78, {T_OFF}")
    a(f"v_and_b32 v54, 15, v{LANE}")
    a("s_lshl_b32 s3, s69, 4")
    a("v_add_u32 v54, s3, v54")
    a("v_lshlrev_b32 v54, 4, v54")
    a("s_and_b32 s3, s66, 3"); a("s_cmp_lg_u32 s3, 0"); a("s_cbranch_scc1 K1_NOPUB")
    a(f"v_mov_b32 v56, v{cur[0]}"); a("v_mov_b32 v57, 1"); a(f"v_mov_b32 v58, v{cur[1]}"); a("v_mov_b32 v59, 1")
    a("s_lshl_b32 s3, s64, 9"); a("s_add_u32 s3, s3, s78")
    a("s_mov_b64 exec, 0xffff")
    a("buffer_store_dwordx4 v[56:59], v54, s[60:63], s3 offen sc0 sc1")
    a("s_mov_b64 exec, -1")
    a.label("K1_NOPUB")
    a(f"v_lshlrev_b32 v55, 4, v{LANE}")
    for t in range(2):
        P=152+16*t
        for i in range(16):
            g=aG[t]+i; u=aU[t]+i; x=60+(i%4)*2; y=x+1
            a(f"v_cvt_pk_bf16_f32 v{g}, 0, v{g}")
            a(f"v_cvt_pk_bf16_f32 v{u}, 0, v{u}")
            a(f"v_mul_f32 v{x}, {NLOG2E}, v{g}")
            a(f"v_exp_f32 v{x}, v{x}")
            a(f"v_add_f32 v{x}, 1.0, v{x}")
            a(f"v_rcp_f32 v{x}, v{x}")
            a(f"v_mul_f32 v{g}, v{g}, v{x}")
            a(f"v_cvt_pk_bf16_f32 v{g}, 0, v{g}")
            a(f"v_mul_f32 v{g}, v{g}, v{u}")
            if i%2==1: a(f"v_cvt_pk_bf16_f32 v{P+i//2}, v{g-1}, v{g}")
        tile = "s71" if t==0 else "s72"
        a(f"s_lshl_b32 s3, s64, 2"); a(f"s_add_u32 s3, s3, {tile}"); a("s_mul_i32 s3, s3, 112")
        a("s_lshl_b32 s4, s65, 2"); a("s_add_u32 s4, s4, s68"); a("s_lshl_b32 s4, s4, 1")
        a("s_add_u32 s3, s3, s4"); a("s_lshl_b32 s3, s3, 10"); a(f"s_add_u32 s3, s3, {A_OFF}")
        a(f"buffer_store_dwordx4 v[{P}:{P+3}], v55, s[60:63], s3 offen")
        a(f"buffer_store_dwordx4 v[{P+4}:{P+7}], v55, s[60:63], s3 offen offset:1024")
    Gr,Gi=60,61; G2=(62,63)
    TB=72
    a(f"v_mov_b32 v{Gr}, 0"); a(f"v_mov_b32 v{Gi}, 0")
    a("s_mov_b32 s79, 0")
    a("s_cmp_eq_u32 s64, 0"); a("s_cbranch_scc1 K1_GDONE")
    a.label("K1_POLL")
    for j in range(15):
        if j%8==0: a(f"s_add_u32 s3, s78, {j*512}")
        a(f"buffer_load_dwordx4 v[{TB+4*j}:{TB+4*j+3}], v54, s[60:63], s3 offen offset:{(j%8)*512} sc0 sc1")
    a(f"v_mov_b32 v{Gr}, 0"); a(f"v_mov_b32 v{Gi}, 0")
    a("s_mov_b64 s[4:5], -1")
    a("s_waitcnt vmcnt(0)")
    for j in range(15):
        b=TB+4*j
        if j>0:
            a(f"s_cmp_le_u32 s64, {j}"); a("s_cbranch_scc1 K1_LEND")
        a(f"v_and_b32 v{b+1}, v{b+1}, v{b+3}")
        a(f"v_fma_f32 v{G2[0]}, v{lcr}, v{Gr}, v{b}")
        a(f"v_fma_f32 v{G2[1]}, v{lcr}, v{Gi}, v{b+2}")
        a(f"v_cmp_eq_u32 vcc, 1, v{b+1}")
        a(f"v_fma_f32 v{G2[0]}, -v{lci}, v{Gi}, v{G2[0]}")
        a(f"v_fma_f32 v{Gi}, v{lci}, v{Gr}, v{G2[1]}")
        a(f"v_mov_b32 v{Gr}, v{G2[0]}")
        a("s_and_b64 s[4:5], s[4:5], vcc")
    a.label("K1_LEND")
    a("s_cmp_eq_u64 s[4:5], -1")
    a("s_cbranch_scc1 K1_GDONE")
    a("s_sleep 1")
    a("s_add_u32 s79, s79, 1")
    a("s_cmp_lt_u32 s79, 0x40000")
    a("s_cbranch_scc1 K1_POLL")
    a.label("K1_GDONE")
    a.nop(4)
    a(f"v_fmac_f32 v{c0r}, v{pwr}, v{Gr}")
    a(f"v_fmac_f32 v{c0i}, v{pwr}, v{Gi}")
    a(f"v_fma_f32 v{c0r}, -v{pwi}, v{Gi}, v{c0r}")
    a(f"v_fmac_f32 v{c0i}, v{pwi}, v{Gr}")
    cur=(c0r,c0i)
    for j in range(8):
        n=(bur[j],bui[j])
        a(f"v_fmac_f32 v{n[0]}, v{lr}, v{cur[0]}")
        a(f"v_fmac_f32 v{n[1]}, v{lr}, v{cur[1]}")
        a(f"v_fma_f32 v{n[0]}, -v{li}, v{cur[1]}, v{n[0]}")
        a(f"v_fmac_f32 v{n[1]}, v{li}, v{cur[0]}")
        cur=n
    PK=64
    for j in range(4):
        a(f"v_cvt_pk_bf16_f32 v{PK+j}, v{bur[2*j]}, v{bur[2*j+1]}")
        a(f"v_cvt_pk_bf16_f32 v{PK+4+j}, -v{bui[2*j]}, -v{bui[2*j+1]}")
    a(f"v_and_b32 v{t0}, 15, v{LANE}")
    a(f"v_mul_u32_u24 v{t0}, 72, v{t0}")
    a(f"v_bfe_u32 v{t1}, v{LANE}, 4, 1")
    a(f"v_lshl_add_u32 v{t0}, v{t1}, 5, v{t0}")
    a(f"v_lshrrev_b32 v{t1}, 5, v{LANE}")
    a(f"v_lshl_add_u32 v{t0}, v{t1}, 3, v{t0}")
    a("s_lshl_b32 s3, s66, 12")
    a(f"v_add_u32 v{t0}, s3, v{t0}")
    a(f"ds_write_b64 v{t0}, v[{PK}:{PK+1}]")
    a(f"ds_write_b64 v{t0}, v[{PK+2}:{PK+3}] offset:16")
    a(f"ds_write_b64 v{t0}, v[{PK+4}:{PK+5}] offset:{16*72}")
    a(f"ds_write_b64 v{t0}, v[{PK+6}:{PK+7}] offset:{16*72+16}")
    a(f"v_bfe_u32 v{t0}, v{LANE}, 2, 2")
    a(f"v_lshl_add_u32 v{t0}, v{t1}, 3, v{t0}")
    a(f"v_mul_u32_u24 v{t0}, 72, v{t0}")
    a(f"v_bfe_u32 v{t1}, v{LANE}, 4, 1")
    a(f"v_lshl_add_u32 v{t0}, v{t1}, 5, v{t0}")
    a(f"v_and_b32 v{t1}, 3, v{LANE}")
    a(f"v_lshl_add_u32 v{t0}, v{t1}, 3, v{t0}")
    a(f"v_add_u32 v{t0}, s3, v{t0}")
    a("s_waitcnt lgkmcnt(0)")
    for sidx in range(2):
        for t in range(2):
            a(f"ds_read_b64_tr_b16 v[{72+4*sidx+2*t}:{72+4*sidx+2*t+1}], v{t0} offset:{(16*sidx+4*t)*72}")
    a("s_lshl_b32 s3, s64, 2"); a("s_add_u32 s3, s3, s71"); a("s_mul_i32 s3, s3, 56")
    a("s_lshl_b32 s4, s65, 1"); a("s_add_u32 s4, s4, s69"); a("s_add_u32 s3, s3, s4")
    a("s_lshl_b32 s3, s3, 10"); a(f"s_add_u32 s3, s3, {H_OFF}"); a(f"s_add_u32 s4, s3, {28*1024}")
    a("s_waitcnt lgkmcnt(0)")
    a("buffer_store_dwordx4 v[72:75], v55, s[60:63], s3 offen")
    a("buffer_store_dwordx4 v[76:79], v55, s[60:63], s4 offen")
    a.label("K1_END"); a("s_endpgm")
    return a, a.maxv+1

def gen_k2():
    a=Asm(); head(a,"k2_kernel")
    import os; a.strict=bool(os.environ.get("K2STRICT"))
    a("s_cmp_ge_u32 s2, 224"); a("s_cbranch_scc1 K2_END")
    a("s_load_dwordx16 s[16:31], s[0:1], 0")
    a("s_load_dwordx16 s[32:47], s[0:1], 64")
    a("s_and_b32 s3, s2, 7"); a("s_lshr_b32 s4, s2, 3")
    a("s_lshl_b32 s5, s3, 2"); a("s_and_b32 s6, s4, 3"); a("s_add_u32 s64, s5, s6")
    a("s_lshr_b32 s65, s4, 2")
    a("v_lshrrev_b32 v2, 6, v0")
    a("v_and_b32 v1, 63, v0")
    a("v_readfirstlane_b32 s66, v2")
    LANE=1
    t0,t1,t2,t3=2,3,4,5
    oF=6; oD=7; oD2=8; rA=[9,10,11,12]
    EX=14
    AF=[32,40]
    ACC=[48,64,80,96]
    BF=112
    D=12
    a("s_waitcnt lgkmcnt(0)")
    srd(a,48,40,41,1792*896)
    srd(a,60,46,47,WS_SIZE)
    srd(a,52,16,17,2048*896)
    srd(a,68,42,43,2048*448*4)
    a("s_cmp_eq_u32 s66, 4")
    a("s_cselect_b32 s56, s26, s28"); a("s_cselect_b32 s57, s27, s29")
    a("s_and_b32 s57, s57, 0xffff"); a(f"s_mov_b32 s58, {448*896}"); a("s_mov_b32 s59, 0x20000")
    a(f"v_lshlrev_b32 v{oF}, 4, v{LANE}")
    a("s_mul_i32 s67, s66, 24576")
    a("s_cmp_ge_u32 s66, 4"); a("s_cbranch_scc1 K2_SSM")
    a(f"v_and_b32 v{t0}, 15, v{LANE}")
    a("s_lshl_b32 s3, s65, 6")
    a(f"v_lshl_add_u32 v{t0}, v{t0}, 2, s3")
    a(f"v_lshlrev_b32 v{t1}, 1, v{t0}")
    a(f"global_load_dwordx2 v[30:31], v{t1}, s[32:33]")
    for g in range(4):
        a(f"v_lshrrev_b32 v{t2}, 4, v{LANE}")
        a(f"v_lshlrev_b32 v{t2}, 4, v{t2}")
        a(f"s_lshl_b32 s3, s66, 2"); a(f"s_add_u32 s3, s3, {g}")
        a(f"v_add_u32 v{t2}, s3, v{t2}")
        a(f"v_and_b32 v{t3}, 31, v{t2}")
        tau(a,208,t3,209)
        a(f"v_and_b32 v209, 32, v{t2}")
        a("v_or_b32 v208, v208, v209")
        a("s_lshl_b32 s3, s64, 6")
        a("v_add_u32 v208, s3, v208")
        a("s_movk_i32 s4, 896")
        a("v_mul_lo_u32 v209, v208, s4")
        a(f"v_add_u32 v209, v209, v{t1}")
        a(f"buffer_load_dwordx2 v[{EX+4*g}:{EX+4*g+1}], v209, s[52:55], 0 offen")
        a(f"v_lshlrev_b32 v{212+g}, 1, v209")
        a("s_lshr_b32 s3, s64, 1"); a("s_mul_i32 s3, s3, 7"); a("s_add_u32 s3, s3, s65"); a("s_lshl_b32 s3, s3, 7")
        a("s_and_b32 s4, s64, 1"); a("s_lshl_b32 s4, s4, 6"); a("s_add_u32 s3, s3, s4")
        a(f"v_add_u32 v209, s3, v{t2}")
        a(f"v_bfe_u32 v210, v{t2}, 1, 3")
        a(f"v_bfe_u32 v211, v{t0}, 3, 3")
        a("v_xor_b32 v210, v210, v211")
        a("v_lshlrev_b32 v210, 4, v210")
        a("v_lshl_add_u32 v209, v209, 7, v210")
        a(f"v_and_b32 v210, 4, v{t0}")
        a("v_lshl_add_u32 v209, v210, 1, v209")
        a(f"buffer_load_dwordx2 v[{EX+4*g+2}:{EX+4*g+3}], v209, s[60:63], 0 offen")
    NPRE=9
    def mainloop(role):
        a.vm=["pre"]*NPRE if role=="F" else []
        a.lg=[]
        if role=="F":
            a(f"v_lshrrev_b32 v{t0}, 3, v{LANE}")
            a(f"v_bfe_u32 v{t1}, v{LANE}, 4, 1")
            a(f"v_lshlrev_b32 v{t1}, 2, v{t1}")
            a(f"v_and_b32 v{t2}, 7, v{LANE}")
            a(f"v_xor_b32 v{t1}, v{t1}, v{t2}")
            a("s_movk_i32 s4, 896")
            a(f"v_mul_lo_u32 v{t0}, v{t0}, s4")
            a(f"v_lshl_add_u32 v{oD}, v{t1}, 4, v{t0}")
            a("s_lshl_b32 s3, s65, 7")
            a(f"v_add_u32 v{oD}, s3, v{oD}")
            a(f"s_mul_i32 s72, s66, {448*896}")
            a(f"v_bfe_u32 v{t0}, v{LANE}, 2, 2")
            a(f"v_lshrrev_b32 v{t1}, 5, v{LANE}")
            a(f"v_lshl_add_u32 v{t1}, v{t1}, 2, v{t0}")
            a(f"v_lshlrev_b32 v{t1}, 7, v{t1}")
            a(f"v_bfe_u32 v{t0}, v{LANE}, 3, 1")
            a(f"v_lshl_add_u32 v{t1}, v{t0}, 6, v{t1}")
            a(f"v_bfe_u32 v{t0}, v{LANE}, 4, 1")
            a(f"v_lshl_add_u32 v{t1}, v{t0}, 5, v{t1}")
            a(f"v_and_b32 v{t0}, 3, v{LANE}")
            a(f"v_lshl_add_u32 v{t1}, v{t0}, 3, v{t1}")
            a(f"v_add_u32 v{rA[0]}, s67, v{t1}")
            a(f"v_xor_b32 v{t1}, 64, v{t1}")
            a(f"v_add_u32 v{rA[1]}, s67, v{t1}")
            a("s_lshl_b32 s3, s64, 1"); a("s_mul_i32 s3, s3, 112"); a("s_mul_i32 s4, s66, 28"); a("s_add_u32 s3, s3, s4")
            a("s_lshl_b32 s3, s3, 10"); a(f"s_add_u32 s73, s3, {A_OFF}"); a(f"s_add_u32 s74, s73, {112*1024}")
        else:
            a(f"v_lshrrev_b32 v{t0}, 3, v{LANE}")
            a("s_lshl_b32 s3, s65, 6")
            a(f"v_add_u32 v{t0}, s3, v{t0}")
            a("s_movk_i32 s4, 896")
            a(f"v_mul_lo_u32 v{t0}, v{t0}, s4")
            a(f"v_lshrrev_b32 v{t1}, 4, v{LANE}")
            a(f"v_and_b32 v{t2}, 7, v{LANE}")
            a(f"v_xor_b32 v{t1}, v{t1}, v{t2}")
            a(f"v_lshl_add_u32 v{oD}, v{t1}, 4, v{t0}")
            a(f"v_xor_b32 v{t1}, 4, v{t1}")
            a(f"v_lshl_add_u32 v{oD2}, v{t1}, 4, v{t0}")
            a(f"v_and_b32 v{t0}, 31, v{LANE}")
            a(f"v_lshrrev_b32 v{t1}, 5, v{LANE}")
            a(f"v_bfe_u32 v{t2}, v{t0}, 1, 3")
            a(f"v_xor_b32 v{t2}, v{t2}, v{t1}")
            a(f"v_lshlrev_b32 v{t2}, 4, v{t2}")
            a(f"v_lshl_add_u32 v{t2}, v{t0}, 7, v{t2}")
            for ks in range(4):
                a(f"v_xor_b32 v{t3}, {ks*32}, v{t2}")
                a(f"v_add_u32 v{rA[ks]}, s67, v{t3}")
            a("s_lshl_b32 s3, s64, 1"); a("s_mul_i32 s3, s3, 56"); a("s_sub_u32 s4, s66, 4"); a("s_mul_i32 s4, s4, 28"); a("s_add_u32 s3, s3, s4")
            a("s_lshl_b32 s3, s3, 10"); a(f"s_add_u32 s73, s3, {H_OFF}"); a(f"s_add_u32 s74, s73, {56*1024}")
        def ld_frag(s):
            b=BF+(s%D)*8
            if s%4==0:
                a(f"s_add_u32 s75, s73, {s*1024}"); a(f"s_add_u32 s76, s74, {s*1024}")
            a(f"buffer_load_dwordx4 v[{b}:{b+3}], v{oF}, s[60:63], s75 offen offset:{(s%4)*1024}"); a.vm_issue(("b",s))
            a(f"buffer_load_dwordx4 v[{b+4}:{b+7}], v{oF}, s[60:63], s76 offen offset:{(s%4)*1024}"); a.vm_issue(("b",s))
        def dmaF(s):
            a(f"s_add_u32 m0, s67, {(s%D)*2048}")
            a(f"s_add_u32 s77, s72, {s*16*896}"); a(f"s_add_u32 s78, s72, {s*16*896+6144}")
            a(f"buffer_load_dwordx4 v{oD}, s[48:51], s77 offen lds"); a.vm_issue(("w",s))
            a(f"buffer_load_dwordx4 v{oD}, s[48:51], s78 offen offset:1024 lds"); a.vm_issue(("w",s))
        def dmaS(cs,pair):
            for e in (2*pair,2*pair+1):
                a(f"s_add_u32 m0, s67, {(cs%3)*8192+(e//4)*4096}")
                a(f"s_mov_b32 s77, {cs*128+e*7168-(e%4)*1024}")
                o = oD if e%2==0 else oD2
                a(f"buffer_load_dwordx4 v{o}, s[56:59], s77 offen offset:{(e%4)*1024} lds"); a.vm_issue(("w",cs*4))
        def reads(s):
            F=AF[s&1]
            if role=="F":
                o=(s%D)*2048
                for dt in range(2):
                    a(f"ds_read_b64_tr_b16 v[{F+4*dt}:{F+4*dt+1}], v{rA[dt]} offset:{o}"); a.lg_issue(s)
                    a(f"ds_read_b64_tr_b16 v[{F+4*dt+2}:{F+4*dt+3}], v{rA[dt]} offset:{o+1024}"); a.lg_issue(s)
            else:
                o=((s//4)%3)*8192
                for dt in range(2):
                    a(f"ds_read_b128 v[{F+4*dt}:{F+4*dt+3}], v{rA[s%4]} offset:{o+dt*4096}"); a.lg_issue(s)
        if role=="F":
            for s in range(D): dmaF(s); ld_frag(s)
        else:
            for s in range(D):
                dmaS(s//4, s%4); ld_frag(s)
        wtag = (lambda s: ("w",s)) if role=="F" else (lambda s: ("w",(s//4)*4))
        if role=="F":
            a.vm_wait("pre")
            a("v_lshlrev_b32 v208, 16, v30"); a("v_and_b32 v209, 0xffff0000, v30"); a("v_lshlrev_b32 v210, 16, v31"); a("v_and_b32 v211, 0xffff0000, v31")
            for g in range(4):
                xr=EX+4*g; nr=xr+2; T=216+8*g
                a(f"v_lshlrev_b32 v{T}, 16, v{xr}"); a(f"v_and_b32 v{T+1}, 0xffff0000, v{xr}")
                a(f"v_lshlrev_b32 v{T+2}, 16, v{xr+1}"); a(f"v_and_b32 v{T+3}, 0xffff0000, v{xr+1}")
                a(f"v_lshlrev_b32 v{T+4}, 16, v{nr}"); a(f"v_and_b32 v{T+5}, 0xffff0000, v{nr}")
                a(f"v_lshlrev_b32 v{T+6}, 16, v{nr+1}"); a(f"v_and_b32 v{T+7}, 0xffff0000, v{nr+1}")
                for k in range(4):
                    a(f"v_mul_f32 v{T+4+k}, v{T+4+k}, v{208+k}")
                    a(f"v_cvt_pk_bf16_f32 v{T+4+k}, 0, v{T+4+k}")
        a.vm_wait(wtag(0))
        reads(0)
        for s in range(28):
            F=AF[s&1]; b=BF+(s%D)*8
            if s<27:
                a.vm_wait(wtag(s+1)); reads(s+1)
            a.vm_wait(("b",s))
            a.lg_wait(s)
            for dt in range(2):
                for tt in range(2):
                    d=ACC[dt*2+tt]; c="0" if s==0 else f"v[{d}:{d+15}]"
                    a(f"v_mfma_f32_32x32x16_bf16 v[{d}:{d+15}], v[{F+4*dt}:{F+4*dt+3}], v[{b+4*tt}:{b+4*tt+3}], {c}")
            if role=="F":
                if s+D<28: dmaF(s+D); ld_frag(s+D)
            else:
                if s>=3:
                    cs=(s-3)//4; pair=(s-3)%4
                    if cs+3<7: dmaS(cs+3,pair)
                if s+D<28: ld_frag(s+D)
        a(f"v_and_b32 v{t0}, 31, v{LANE}")
        a(f"v_mul_u32_u24 v{t0}, 272, v{t0}")
        a(f"v_lshrrev_b32 v{t1}, 5, v{LANE}")
        a(f"v_lshl_add_u32 v{t0}, v{t1}, 4, v{t0}")
        a(f"v_add_u32 v{t0}, s67, v{t0}")
        for dt in range(2):
            for tt in range(2):
                d=ACC[dt*2+tt]
                for q in range(4):
                    a(f"ds_write_b128 v{t0}, v[{d+4*q}:{d+4*q+3}] offset:{tt*32*272+dt*128+q*32}")
        a("s_waitcnt lgkmcnt(0)")
        a("s_barrier")
    mainloop("F")
    a(f"v_lshrrev_b32 v{t0}, 4, v{LANE}")
    a(f"v_lshlrev_b32 v{t0}, 4, v{t0}")
    a("s_lshl_b32 s3, s66, 2")
    a(f"v_add_u32 v{t0}, s3, v{t0}")
    a(f"v_mul_u32_u24 v{t0}, 272, v{t0}")
    a(f"v_and_b32 v{t1}, 15, v{LANE}")
    a(f"v_lshl_add_u32 v{t0}, v{t1}, 4, v{t0}")
    a(f"v_add_u32 v{t1}, {3*24576}, v{t0}")
    PB=48
    for g in range(4):
        for p in range(6):
            r=PB+(g*6+p)*4
            base = t0 if p<3 else t1
            a(f"ds_read_b128 v[{r}:{r+3}], v{base} offset:{(p%3)*24576+g*272}"); a.lg_issue(("p",g))
    for g in range(4):
        a.lg_wait(("p",g))
        r=PB+g*24; T=216+8*g
        for k in range(4):
            f=r+k
            a(f"v_add_f32 v{f}, v{f}, v{f+4}")
            a(f"v_add_f32 v{f+8}, v{f+8}, v{f+12}")
            a(f"v_add_f32 v{f+16}, v{f+16}, v{f+20}")
            a(f"v_add_f32 v{f}, v{f}, v{f+8}")
            a(f"v_add_f32 v{f+16}, v{f+16}, v{T+4+k}")
            a(f"v_cvt_pk_bf16_f32 v{f}, 0, v{f}")
            a(f"v_mul_f32 v{f+4}, {NLOG2E}, v{f}")
            a(f"v_exp_f32 v{f+4}, v{f+4}")
            a(f"v_add_f32 v{f+4}, 1.0, v{f+4}")
            a(f"v_rcp_f32 v{f+4}, v{f+4}")
            a(f"v_mul_f32 v{f}, v{f}, v{f+4}")
            a(f"v_cvt_pk_bf16_f32 v{f}, 0, v{f}")
            a(f"v_fma_f32 v{f+8}, v{f}, v{f+16}, v{T+k}")
        a(f"buffer_store_dwordx4 v[{r+8}:{r+11}], v{212+g}, s[68:71], 0 offen")
    a("s_endpgm")
    a.label("K2_SSM")
    mainloop("S")
    a.label("K2_END"); a("s_endpgm")
    return a, a.maxv+1

def main(out):
    k0,v0=gen_k0(); k1,v1=gen_k1(); k2,v2=gen_k2()
    hdr=open("cdna_kernels/"+NAME+".s.ref").read().split("; Override launch")[0]
    s=hdr
    s+="; @launch kernel=k0_kernel grid=(256,1,1) block=(256,1,1) lds=0\n"
    s+="; @launch kernel=k1_kernel grid=(224,1,1) block=(512,1,1) lds=163840\n"
    s+="; @launch kernel=k2_kernel grid=(224,1,1) block=(384,1,1) lds=147456\n"
    s+='.amdgcn_target "amdgcn-amd-amdhsa--gfx950"\n.text\n'
    s+=k0.text()+k1.text()+k2.text()
    s+='.section .rodata,"a"\n'
    s+=kd("k0_kernel",v0)+kd("k1_kernel",v1)+kd("k2_kernel",v2)
    open(out,"w").write(s)
    print("vgprs",v0,v1,v2, "bytes",len(s))
if __name__=="__main__":
    main(sys.argv[1] if len(sys.argv)>1 else "cdna_kernels/"+NAME+".s")
```

```python
import sys
from asmlib import *

NAME="recurrent_scan__ssm_conv_s5__swiglu_ffn__prompt"
XN_OFF=0
A_OFF=2<<20
H_OFF=10<<20
T_OFF=14<<20
WS_SIZE=16<<20
LOG2E=0x3fb8aa3b
NLOG2E=0xbfb8aa3b
INV2PI=0x3e22f983

def srd(a, d, lo, hi, size):
    a(f"s_mov_b32 s{d}, s{lo}")
    a(f"s_and_b32 s{d+1}, s{hi}, 0xffff")
    a(f"s_mov_b32 s{d+2}, {size}")
    a(f"s_mov_b32 s{d+3}, 0x20000")

def kd(name, vgpr, sgpr=102):
    acc=(vgpr+3)//4*4
    return f""".p2align 6
.amdhsa_kernel {name}
  .amdhsa_next_free_vgpr {vgpr}
  .amdhsa_next_free_sgpr {sgpr}
  .amdhsa_accum_offset {acc}
  .amdhsa_group_segment_fixed_size 0
  .amdhsa_kernarg_size 128
  .amdhsa_user_sgpr_count 2
  .amdhsa_user_sgpr_kernarg_segment_ptr 1
  .amdhsa_system_sgpr_workgroup_id_x 1
  .amdhsa_float_denorm_mode_32 3
.end_amdhsa_kernel
"""

import os
STAMP=bool(os.environ.get("STAMP"))
NOROUND=bool(os.environ.get("NOROUND"))
ST_OFF=15<<20
def stamp(a,i):
    if STAMP: a(f"s_memtime s[{80+2*i}:{81+2*i}]")
def stamp_rt(a,i):
    if STAMP: a(f"s_memrealtime s[{80+2*i}:{81+2*i}]")
def stamp_flush(a,n,koff,wsrd,wreg):
    if not STAMP: return
    a("s_waitcnt lgkmcnt(0)")
    a(f"s_lshl_b32 s3, s2, 3"); a(f"s_add_u32 s3, s3, s{wreg}"); a("s_lshl_b32 s3, s3, 6"); a(f"s_add_u32 s3, s3, {ST_OFF+koff}")
    a("v_mov_b32 v2, 0")
    a("s_mov_b64 exec, 1")
    for i in range(n):
        a(f"v_mov_b32 v3, s{80+2*i}")
        a(f"buffer_store_dword v3, v2, s[{wsrd}:{wsrd+3}], s3 offen offset:{4*i}")
    a("s_mov_b64 exec, -1")
def head(a,name):
    a.raw(f".globl {name}\n.p2align 8\n.type {name},@function\n{name}:")

def tau_inv(a, dst, t, tmp):
    a(f"v_and_b32 v{dst}, 3, v{t}")
    a(f"v_bfe_u32 v{tmp}, v{t}, 2, 2")
    a(f"v_lshl_or_b32 v{dst}, v{tmp}, 3, v{dst}")
    a(f"v_bfe_u32 v{tmp}, v{t}, 4, 1")
    a(f"v_lshl_or_b32 v{dst}, v{tmp}, 2, v{dst}")
def tau(a, dst, r, tmp):
    a(f"v_and_b32 v{dst}, 3, v{r}")
    a(f"v_bfe_u32 v{tmp}, v{r}, 3, 2")
    a(f"v_lshl_or_b32 v{dst}, v{tmp}, 2, v{dst}")
    a(f"v_bfe_u32 v{tmp}, v{r}, 2, 1")
    a(f"v_lshl_or_b32 v{dst}, v{tmp}, 4, v{dst}")

def allreduce32(a, v, t):
    a(f"v_add_f32_dpp v{v}, v{v}, v{v} quad_perm:[1,0,3,2] row_mask:0xf bank_mask:0xf")
    a(f"v_add_f32_dpp v{v}, v{v}, v{v} quad_perm:[2,3,0,1] row_mask:0xf bank_mask:0xf")
    a(f"v_add_f32_dpp v{v}, v{v}, v{v} row_half_mirror row_mask:0xf bank_mask:0xf")
    a(f"v_add_f32_dpp v{v}, v{v}, v{v} row_mirror row_mask:0xf bank_mask:0xf")
    a(f"v_mov_b32 v{t}, v{v}")
    a(f"v_permlane16_swap_b32 v{v}, v{t}")
    a(f"v_add_f32 v{v}, v{v}, v{t}")

def gen_k0():
    a=Asm(); head(a,"k0_kernel")
    a("s_cmp_ge_u32 s2, 256"); a("s_cbranch_scc1 K0_END")
    a("s_load_dwordx2 s[4:5], s[0:1], 0")
    a("s_load_dwordx2 s[6:7], s[0:1], 120")
    a("v_and_b32 v1, 63, v0")
    a("v_lshrrev_b32 v2, 5, v0")
    a("s_lshl_b32 s3, s2, 3")
    a("v_add_u32 v2, s3, v2")
    a("v_and_b32 v3, 31, v0")
    a("s_movk_i32 s16, 896")
    a("v_mul_lo_u32 v4, v2, s16")
    a("v_lshl_add_u32 v4, v3, 4, v4")
    for i in range(8): a(f"v_mov_b32 v{10+i}, 0")
    a("s_waitcnt lgkmcnt(0)")
    srd(a,8,4,5,2048*896); srd(a,12,6,7,WS_SIZE)
    a("v_cmp_gt_u32 vcc, 28, v3")
    a("s_and_saveexec_b64 s[18:19], vcc")
    a("buffer_load_dwordx4 v[10:13], v4, s[8:11], 0 offen")
    a("buffer_load_dwordx4 v[14:17], v4, s[8:11], 0 offen offset:448")
    a("s_mov_b64 s[20:21], exec")
    a("s_mov_b64 exec, s[18:19]")
    a("s_cmp_ge_u32 s2, 28"); a("s_cbranch_scc1 K0_NOZ")
    a("s_lshl_b32 s3, s2, 12")
    a(f"s_add_u32 s3, s3, {T_OFF}")
    a("v_lshlrev_b32 v5, 4, v0")
    for i in range(4): a(f"v_mov_b32 v{40+i}, 0")
    a("buffer_store_dwordx4 v[40:43], v5, s[12:15], s3 offen")
    a.label("K0_NOZ")
    a("v_and_b32 v5, 31, v2")
    tau_inv(a,6,5,7)
    a("v_and_b32 v7, 0x60, v2")
    a("v_or_b32 v6, v6, v7")
    a("v_lshrrev_b32 v7, 7, v2")
    a("v_mul_u32_u24 v7, 7, v7")
    a("v_bfe_u32 v8, v6, 1, 3")
    for k,(jr) in enumerate((0,28)):
        a(f"v_add_u32 v9, {jr}, v3")
        a(f"v_lshrrev_b32 v18, 3, v9")
        a(f"v_add_u32 v18, v18, v7")
        a(f"v_lshl_add_u32 v18, v18, 7, v6")
        a(f"v_and_b32 v9, 7, v9")
        a(f"v_xor_b32 v9, v9, v8")
        a(f"v_lshlrev_b32 v9, 4, v9")
        a(f"v_lshl_add_u32 v{44+k}, v18, 7, v9")
    a("s_waitcnt vmcnt(0)")
    for i in range(8):
        a(f"v_lshlrev_b32 v{20+2*i}, 16, v{10+i}")
        a(f"v_and_b32 v{21+2*i}, 0xffff0000, v{10+i}")
    a("v_add_f32 v36, v20, v21"); a("v_add_f32 v37, v22, v23")
    for i in range(2,8,2):
        a(f"v_add_f32 v36, v36, v{20+2*i}"); a(f"v_add_f32 v37, v37, v{22+2*i}")
        a(f"v_add_f32 v36, v36, v{21+2*i}"); a(f"v_add_f32 v37, v37, v{23+2*i}")
    a("v_add_f32 v36, v36, v37")
    allreduce32(a,36,37)
    a("v_mul_f32 v36, 0x3b124925, v36")
    a("v_mov_b32 v38, 0"); a("v_mov_b32 v39, 0")
    a("s_mov_b64 exec, s[20:21]")
    for i in range(16):
        a(f"v_sub_f32 v37, v{20+i}, v36")
        a(f"v_fmac_f32 v{38+(i&1)}, v37, v37")
    a("s_mov_b64 exec, s[18:19]")
    a("v_add_f32 v38, v38, v39")
    allreduce32(a,38,37)
    a("v_mul_f32 v38, 0x3b124925, v38")
    a("v_cvt_pk_bf16_f32 v36, 0, v36")
    a("v_cvt_pk_bf16_f32 v38, 0, v38")
    a("v_add_f32 v38, 0x3727c5ac, v38")
    a("v_cvt_pk_bf16_f32 v38, 0, v38")
    a("v_sqrt_f32 v38, v38")
    a("v_cvt_pk_bf16_f32 v38, 0, v38")
    a("v_rcp_f32 v39, v38")
    for i in range(16):
        r=20+i
        a(f"v_sub_f32 v{r}, v{r}, v36")
        a(f"v_cvt_pk_bf16_f32 v{r}, 0, v{r}")
        a(f"v_mul_f32 v37, v{r}, v39")
        a(f"v_fma_f32 v{r}, -v37, v38, v{r}")
        a(f"v_fma_f32 v{r}, v{r}, v39, v37")
    for i in range(8):
        a(f"v_cvt_pk_bf16_f32 v{10+i}, v{20+2*i}, v{21+2*i}")
    a("s_mov_b64 exec, s[20:21]")
    a("buffer_store_dwordx4 v[10:13], v44, s[12:15], 0 offen")
    a("buffer_store_dwordx4 v[14:17], v45, s[12:15], 0 offen")
    a.label("K0_END"); a("s_endpgm")
    return a, 48

XS=0; BS=49152; WSL=73728; SCR=155648
def gen_k1():
    a=Asm(); head(a,"k1_kernel")
    a("s_cmp_ge_u32 s2, 224"); a("s_cbranch_scc1 K1_END")
    stamp_rt(a,0); stamp(a,1)
    a("s_load_dwordx16 s[16:31], s[0:1], 0")
    a("s_load_dwordx16 s[32:47], s[0:1], 64")
    a("s_and_b32 s3, s2, 7"); a("s_lshr_b32 s4, s2, 3")
    a("s_lshr_b32 s5, s3, 1"); a("s_lshl_b32 s5, s5, 2"); a("s_and_b32 s6, s4, 3"); a("s_add_u32 s64, s5, s6")
    a("s_and_b32 s5, s3, 1"); a("s_mul_i32 s5, s5, 7"); a("s_lshr_b32 s6, s4, 2"); a("s_add_u32 s65, s5, s6")
    a("v_lshrrev_b32 v2, 6, v0")
    a("v_and_b32 v1, 63, v0")
    a("v_readfirstlane_b32 s66, v2")
    a("s_and_b32 s67, s66, 1")
    a("s_lshr_b32 s68, s66, 1")
    a("s_lshr_b32 s69, s68, 1")
    a("s_and_b32 s70, s68, 1")
    a("s_lshl_b32 s71, s67, 1"); a("s_add_u32 s71, s71, s70")
    a("s_xor_b32 s72, s71, 1")
    LANE=1
    vX0=2; vX1=6; vB=10; vW=14; vW2=15; oX=16; oB=17; oW=18
    vseg=19; lr,li,cr,ci,l8r,l8i,lcr,lci,pwr,pwi=range(20,30)
    t0,t1,t2,t3=30,31,152,153
    FR=[32,52]
    aG=[72,88]; aU=[104,120]; aS=136
    a(f"v_and_b32 v{t0}, 15, v{LANE}")
    a("s_lshl_b32 s3, s65, 5"); a("s_lshl_b32 s4, s69, 4"); a("s_add_u32 s3, s3, s4")
    a(f"v_add_u32 v{t0}, s3, v{t0}")
    a(f"v_lshlrev_b32 v{t0}, 1, v{t0}")
    a("s_waitcnt lgkmcnt(0)")
    a(f"global_load_ushort v154, v{t0}, s[18:19]"); a.vm_issue("p")
    a(f"global_load_ushort v155, v{t0}, s[20:21]"); a.vm_issue("p")
    a(f"global_load_ushort v156, v{t0}, s[30:31]"); a.vm_issue("p")
    srd(a,48,36,37,448*3584); srd(a,52,38,39,448*3584); srd(a,60,46,47,WS_SIZE)
    a("s_and_b32 s3, s66, 2"); a("s_cmp_eq_u32 s3, 0")
    a("s_cselect_b32 s56, s22, s24"); a("s_cselect_b32 s57, s23, s25")
    a("s_and_b32 s57, s57, 0xffff"); a(f"s_mov_b32 s58, {448*896}"); a("s_mov_b32 s59, 0x20000")
    a("s_lshl_b32 s3, s66, 11")
    a(f"v_lshlrev_b32 v{oX}, 4, v{LANE}")
    a(f"v_add_u32 v{oX}, s3, v{oX}")
    a(f"v_lshrrev_b32 v{t0}, 3, v{LANE}")
    a("s_lshl_b32 s3, s66, 3")
    a(f"v_add_u32 v{t1}, s3, v{t0}")
    a(f"v_bfe_u32 v{t1}, v{t1}, 1, 3")
    a(f"v_and_b32 v{t2}, 7, v{LANE}")
    a(f"v_xor_b32 v{t1}, v{t1}, v{t2}")
    a("s_lshl_b32 s3, s65, 5"); a("s_lshr_b32 s4, s66, 2"); a("s_lshl_b32 s4, s4, 4"); a("s_add_u32 s3, s3, s4")
    a("s_lshl_b32 s4, s67, 3"); a("s_add_u32 s3, s3, s4")
    a(f"v_add_u32 v{t0}, s3, v{t0}")
    a("s_movk_i32 s4, 896")
    a(f"v_mul_lo_u32 v{t0}, v{t0}, s4")
    a(f"v_lshl_add_u32 v{oB}, v{t1}, 4, v{t0}")
    a(f"v_lshrrev_b32 v{t0}, 4, v{LANE}")
    a(f"v_and_b32 v{t1}, 15, v{LANE}")
    a(f"v_lshlrev_b32 v{t2}, 2, v{t0}")
    a(f"v_xor_b32 v{t1}, v{t1}, v{t2}")
    a("s_lshl_b32 s3, s66, 2")
    a(f"v_add_u32 v{t0}, s3, v{t0}")
    a("s_movk_i32 s4, 3584")
    a(f"v_mul_lo_u32 v{t0}, v{t0}, s4")
    a(f"v_lshl_add_u32 v{oW}, v{t1}, 4, v{t0}")
    a("s_lshl_b32 s3, s65, 8")
    a(f"v_add_u32 v{oW}, s3, v{oW}")
    a("s_mul_i32 s73, s64, 7"); a("s_lshl_b32 s73, s73, 14")
    a("s_lshl_b32 s74, s66, 11")
    a("s_lshl_b32 s75, s66, 10")
    def dma_xb(J):
        slot=J%3
        a(f"s_add_u32 m0, s74, {XS+slot*16384}")
        a(f"s_add_u32 s76, s73, {J*16384}")
        a(f"buffer_load_dwordx4 v{oX}, s[60:63], s76 offen lds"); a.vm_issue(("x",J))
        a(f"buffer_load_dwordx4 v{oX}, s[60:63], s76 offen offset:1024 lds"); a.vm_issue(("x",J))
        a(f"s_add_u32 m0, s75, {BS+slot*8192}")
        a(f"s_movk_i32 s76, {J*128}")
        a(f"buffer_load_dwordx4 v{oB}, s[56:59], s76 offen lds"); a.vm_issue(("x",J))
    def dma_w(i):
        slot=i%5
        a(f"s_add_u32 m0, s75, {WSL+slot*16384}")
        a(f"s_mov_b32 s77, {i*32*3584}")
        a(f"buffer_load_dwordx4 v{oW}, s[48:51], s77 offen lds"); a.vm_issue(("w",i))
        a(f"s_add_u32 m0, s75, {WSL+slot*16384+8192}")
        a(f"buffer_load_dwordx4 v{oW}, s[52:55], s77 offen lds"); a.vm_issue(("w",i))
    dma_xb(0); dma_w(0); dma_w(1); dma_xb(1); dma_w(2); dma_w(3); dma_xb(2); dma_w(4)
    a(f"v_and_b32 v{t0}, 31, v{LANE}")
    a(f"v_lshrrev_b32 v{t1}, 5, v{LANE}")
    a(f"v_bfe_u32 v{t2}, v{t0}, 1, 3")
    a(f"v_xor_b32 v{t2}, v{t2}, v{t1}")
    a(f"v_lshlrev_b32 v{t2}, 4, v{t2}")
    a(f"v_lshl_add_u32 v{t2}, v{t0}, 7, v{t2}")
    a("s_lshl_b32 s3, s71, 12"); a("s_lshl_b32 s4, s72, 12"); a("s_lshl_b32 s5, s69, 12"); a(f"s_add_u32 s5, s5, {BS}")
    for ks in range(4):
        a(f"v_xor_b32 v{t3}, {ks*32}, v{t2}")
        a(f"v_add_u32 v{vX0+ks}, s3, v{t3}")
        a(f"v_add_u32 v{vX1+ks}, s4, v{t3}")
        a(f"v_add_u32 v{vB+ks}, s5, v{t3}")
    a(f"v_bfe_u32 v{t0}, v{LANE}, 2, 2")
    a(f"v_lshl_add_u32 v{t2}, v{t1}, 3, v{t0}")
    a(f"v_lshlrev_b32 v{t2}, 8, v{t2}")
    a(f"v_xor_b32 v{t0}, s68, v{t0}")
    a(f"v_lshl_add_u32 v{t2}, v{t0}, 6, v{t2}")
    a(f"v_bfe_u32 v{t0}, v{LANE}, 4, 1")
    a(f"v_lshl_add_u32 v{t2}, v{t0}, 5, v{t2}")
    a(f"v_and_b32 v{t0}, 3, v{LANE}")
    a(f"v_lshl_add_u32 v{t2}, v{t0}, 3, v{t2}")
    a(f"v_add_u32 v{vW}, {WSL}, v{t2}")
    a(f"v_add_u32 v{vW2}, {WSL+65536}, v{t2}")
    a.vm_wait("p")
    a("v_lshlrev_b32 v154, 16, v154"); a("v_lshlrev_b32 v155, 16, v155"); a("v_lshlrev_b32 v156, 16, v156")
    a(f"v_mul_f32 v156, {LOG2E}, v156")
    a("v_exp_f32 v156, v156")
    a("v_cvt_pk_bf16_f32 v156, 0, v156")
    a("v_mul_f32 v157, v156, v154")
    a(f"v_mul_f32 v157, {LOG2E}, v157")
    a("v_mul_f32 v158, v156, v155")
    a(f"v_mul_f32 v158, {INV2PI}, v158")
    def cpow(dr,di,n):
        a(f"v_mul_f32 v159, {n}, v157")
        a(f"v_mul_f32 v160, {n}, v158")
        a(f"v_exp_f32 v159, v159")
        a(f"v_rndne_f32 v161, v160")
        a(f"v_sub_f32 v160, v160, v161")
        a(f"v_cos_f32 v{dr}, v160")
        a(f"v_sin_f32 v{di}, v160")
        a(f"v_mul_f32 v{dr}, v{dr}, v159")
        a(f"v_mul_f32 v{di}, v{di}, v159")
    cpow(lr,li,"1.0"); cpow(l8r,l8i,"0x41000000"); cpow(lcr,lci,"0x43000000")
    a(f"v_lshrrev_b32 v{vseg}, 4, v{LANE}")
    a("s_lshl_b32 s3, s71, 2")
    a(f"v_add_u32 v{vseg}, s3, v{vseg}")
    a(f"v_lshlrev_b32 v162, 3, v{vseg}")
    a(f"v_cvt_f32_u32 v162, v162")
    cpow(pwr,pwi,"v162")
    a(f"v_add_f32 v159, -1.0, v{lr}")
    a("v_mul_f32 v160, v154, v154")
    a("v_fmac_f32 v160, v155, v155")
    a("v_rcp_f32 v160, v160")
    a("v_add_f32 v160, v160, v160")
    a("v_mul_f32 v161, v159, v154")
    a(f"v_fmac_f32 v161, v{li}, v155")
    a(f"v_mul_f32 v{cr}, v161, v160")
    a(f"v_mul_f32 v161, v{li}, v154")
    a(f"v_fma_f32 v161, -v159, v155, v161")
    a(f"v_mul_f32 v{ci}, v161, v160")

    def reads(s):
        F=FR[s&1]; i=s//2; J=s//4; ks=s%4; k2=s%2
        xs=(J%3)*16384; bs=(J%3)*8192; slot=i%5
        wb=vW if slot<4 else vW2
        wo=(slot%4)*16384+k2*4096
        a(f"ds_read_b64_tr_b16 v[{F+8}:{F+9}], v{wb} offset:{wo}"); a.lg_issue(s)
        a(f"ds_read_b64_tr_b16 v[{F+10}:{F+11}], v{wb} offset:{wo+1024}"); a.lg_issue(s)
        a(f"ds_read_b128 v[{F}:{F+3}], v{vX0+ks} offset:{xs}"); a.lg_issue(s)
        a(f"ds_read_b128 v[{F+4}:{F+7}], v{vX1+ks} offset:{xs}"); a.lg_issue(s)
        a(f"ds_read_b64_tr_b16 v[{F+12}:{F+13}], v{wb} offset:{wo+8192}"); a.lg_issue(s)
        a(f"ds_read_b64_tr_b16 v[{F+14}:{F+15}], v{wb} offset:{wo+8192+1024}"); a.lg_issue(s)
        a(f"ds_read_b128 v[{F+16}:{F+19}], v{vB+ks} offset:{bs}"); a.lg_issue(s)
    def mf(d,A,B,s):
        c = "0" if s==0 else f"v[{d}:{d+15}]"
        a(f"v_mfma_f32_32x32x16_bf16 v[{d}:{d+15}], v[{A}:{A+3}], v[{B}:{B+3}], {c}")
    a.vm_wait([("x",0),("w",0)])
    a("s_barrier")
    stamp(a,2)
    if STAMP: a("s_waitcnt lgkmcnt(0)")
    reads(0)
    for s in range(28):
        F=FR[s&1]; i=s//2
        a.lg_wait(s)
        if s==27:
            mf(aS,F,F+16,s)
        mf(aG[0],F+8,F,s); mf(aG[1],F+8,F+4,s)
        if s%2==1 and i<13:
            need=[("w",i+1)]
            if (i+1)%2==0: need.append(("x",(i+1)//2))
            a.vm_wait(need)
            a("s_barrier")
        if s<27: reads(s+1)
        mf(aU[0],F+12,F,s)
        if s%2==1 and i<13:
            if i>=1 and i+4<=13: dma_w(i+4)
        mf(aU[1],F+12,F+4,s)
        if s%2==1 and i<13:
            if i%2==0 and i>=2 and i//2+2<=6: dma_xb(i//2+2)
        if s<27: mf(aS,F,F+16,s)
    stamp(a,3)
    re=[aS+j for j in range(8)]; im=[aS+8+j for j in range(8)]
    for j in range(8): a(f"v_permlane16_swap_b32 v{re[j]}, v{im[j]}")
    BU=32
    bur=[BU+j for j in range(8)]; bui=[BU+8+j for j in range(8)]
    for j in range(8):
        a(f"v_mul_f32 v{bur[j]}, v{cr}, v{re[j]}")
        a(f"v_mul_f32 v{bui[j]}, v{cr}, v{im[j]}")
        a(f"v_fma_f32 v{bur[j]}, -v{ci}, v{im[j]}, v{bur[j]}")
        a(f"v_fmac_f32 v{bui[j]}, v{ci}, v{re[j]}")
    hA=(48,49); hB=(50,51)
    cur=(bur[0],bui[0])
    for j in range(1,8):
        n = hA if j%2 else hB
        a(f"v_fma_f32 v{n[0]}, v{lr}, v{cur[0]}, v{bur[j]}")
        a(f"v_fma_f32 v{n[1]}, v{lr}, v{cur[1]}, v{bui[j]}")
        a(f"v_fma_f32 v{n[0]}, -v{li}, v{cur[1]}, v{n[0]}")
        a(f"v_fmac_f32 v{n[1]}, v{li}, v{cur[0]}")
        cur=n
    assert cur==hA
    a(f"v_and_b32 v{t0}, 15, v{LANE}")
    a("s_lshl_b32 s3, s69, 7"); a(f"s_add_u32 s3, s3, {SCR}")
    a(f"v_lshlrev_b32 v{t0}, 3, v{t0}")
    a(f"v_add_u32 v{t0}, s3, v{t0}")
    a(f"v_lshl_add_u32 v{t1}, v{vseg}, 8, v{t0}")
    a(f"ds_write_b64 v{t1}, v[{hA[0]}:{hA[1]}]")
    a("s_waitcnt lgkmcnt(0)")
    a("s_barrier")
    E=152
    for sp in range(16):
        a(f"ds_read_b64 v[{E+2*sp}:{E+2*sp+1}], v{t0} offset:{sp*256}"); a.lg_issue(("e",sp))
    c0r,c0i=52,53
    a(f"v_mov_b32 v{c0r}, 0"); a(f"v_mov_b32 v{c0i}, 0")
    a.lg_wait(("e",0))
    cur=(E,E+1)
    for sp in range(1,16):
        a(f"v_cmp_eq_u32 vcc, {sp}, v{vseg}")
        a.lg_wait(("e",sp))
        n=(E+2*sp,E+2*sp+1)
        a(f"v_fmac_f32 v{n[0]}, v{l8r}, v{cur[0]}")
        a(f"v_fmac_f32 v{n[1]}, v{l8r}, v{cur[1]}")
        a(f"v_cndmask_b32 v{c0r}, v{c0r}, v{cur[0]}, vcc")
        a(f"v_cndmask_b32 v{c0i}, v{c0i}, v{cur[1]}, vcc")
        a(f"v_fma_f32 v{n[0]}, -v{l8i}, v{cur[1]}, v{n[0]}")
        a(f"v_fmac_f32 v{n[1]}, v{l8i}, v{cur[0]}")
        cur=n
    a("s_mul_i32 s78, s65, 16"); a("s_lshl_b32 s78, s78, 9"); a(f"s_add_u32 s78, s78, {T_OFF}")
    a(f"v_and_b32 v54, 15, v{LANE}")
    a("s_lshl_b32 s3, s69, 4")
    a("v_add_u32 v54, s3, v54")
    a("v_lshlrev_b32 v54, 4, v54")
    a("s_and_b32 s3, s66, 3"); a("s_cmp_lg_u32 s3, 0"); a("s_cbranch_scc1 K1_NOPUB")
    a(f"v_mov_b32 v56, v{cur[0]}"); a("v_mov_b32 v57, 1"); a(f"v_mov_b32 v58, v{cur[1]}"); a("v_mov_b32 v59, 1")
    a("s_lshl_b32 s3, s64, 9"); a("s_add_u32 s3, s3, s78")
    a("s_mov_b64 exec, 0xffff")
    a("buffer_store_dwordx4 v[56:59], v54, s[60:63], s3 offen sc0 sc1")
    a("s_mov_b64 exec, -1")
    a.label("K1_NOPUB")
    stamp(a,4)
    a(f"v_lshlrev_b32 v55, 4, v{LANE}")
    for t in range(2):
        P=152+16*t
        for i in range(16):
            g=aG[t]+i; u=aU[t]+i; x=60+(i%4)*2; y=x+1
            if not NOROUND:
                a(f"v_cvt_pk_bf16_f32 v{g}, 0, v{g}")
                a(f"v_cvt_pk_bf16_f32 v{u}, 0, v{u}")
            a(f"v_mul_f32 v{x}, {NLOG2E}, v{g}")
            a(f"v_exp_f32 v{x}, v{x}")
            a(f"v_add_f32 v{x}, 1.0, v{x}")
            a(f"v_rcp_f32 v{x}, v{x}")
            a(f"v_mul_f32 v{g}, v{g}, v{x}")
            if not NOROUND: a(f"v_cvt_pk_bf16_f32 v{g}, 0, v{g}")
            a(f"v_mul_f32 v{g}, v{g}, v{u}")
            if i%2==1: a(f"v_cvt_pk_bf16_f32 v{P+i//2}, v{g-1}, v{g}")
        tile = "s71" if t==0 else "s72"
        a(f"s_lshl_b32 s3, s64, 2"); a(f"s_add_u32 s3, s3, {tile}"); a("s_mul_i32 s3, s3, 112")
        a("s_lshl_b32 s4, s65, 2"); a("s_add_u32 s4, s4, s68"); a("s_lshl_b32 s4, s4, 1")
        a("s_add_u32 s3, s3, s4"); a("s_lshl_b32 s3, s3, 10"); a(f"s_add_u32 s3, s3, {A_OFF}")
        a(f"buffer_store_dwordx4 v[{P}:{P+3}], v55, s[60:63], s3 offen")
        a(f"buffer_store_dwordx4 v[{P+4}:{P+7}], v55, s[60:63], s3 offen offset:1024")
    stamp(a,5)
    Gr,Gi=60,61; G2=(62,63)
    TB=72
    a(f"v_mov_b32 v{Gr}, 0"); a(f"v_mov_b32 v{Gi}, 0")
    a("s_mov_b32 s79, 0")
    a("s_cmp_eq_u32 s64, 0"); a("s_cbranch_scc1 K1_GDONE")
    a.label("K1_POLL")
    for j in range(15):
        if j%8==0: a(f"s_add_u32 s3, s78, {j*512}")
        a(f"buffer_load_dwordx4 v[{TB+4*j}:{TB+4*j+3}], v54, s[60:63], s3 offen offset:{(j%8)*512} sc0 sc1")
    a(f"v_mov_b32 v{Gr}, 0"); a(f"v_mov_b32 v{Gi}, 0")
    a("s_mov_b64 s[4:5], -1")
    a("s_waitcnt vmcnt(0)")
    for j in range(15):
        b=TB+4*j
        if j>0:
            a(f"s_cmp_le_u32 s64, {j}"); a("s_cbranch_scc1 K1_LEND")
        a(f"v_and_b32 v{b+1}, v{b+1}, v{b+3}")
        a(f"v_fma_f32 v{G2[0]}, v{lcr}, v{Gr}, v{b}")
        a(f"v_fma_f32 v{G2[1]}, v{lcr}, v{Gi}, v{b+2}")
        a(f"v_cmp_eq_u32 vcc, 1, v{b+1}")
        a(f"v_fma_f32 v{G2[0]}, -v{lci}, v{Gi}, v{G2[0]}")
        a(f"v_fma_f32 v{Gi}, v{lci}, v{Gr}, v{G2[1]}")
        a(f"v_mov_b32 v{Gr}, v{G2[0]}")
        a("s_and_b64 s[4:5], s[4:5], vcc")
    a.label("K1_LEND")
    a("s_cmp_eq_u64 s[4:5], -1")
    a("s_cbranch_scc1 K1_GDONE")
    a("s_sleep 1")
    a("s_add_u32 s79, s79, 1")
    a("s_cmp_lt_u32 s79, 0x40000")
    a("s_cbranch_scc1 K1_POLL")
    a.label("K1_GDONE")
    a.nop(4)
    stamp(a,6)
    a(f"v_fmac_f32 v{c0r}, v{pwr}, v{Gr}")
    a(f"v_fmac_f32 v{c0i}, v{pwr}, v{Gi}")
    a(f"v_fma_f32 v{c0r}, -v{pwi}, v{Gi}, v{c0r}")
    a(f"v_fmac_f32 v{c0i}, v{pwi}, v{Gr}")
    cur=(c0r,c0i)
    for j in range(8):
        n=(bur[j],bui[j])
        a(f"v_fmac_f32 v{n[0]}, v{lr}, v{cur[0]}")
        a(f"v_fmac_f32 v{n[1]}, v{lr}, v{cur[1]}")
        a(f"v_fma_f32 v{n[0]}, -v{li}, v{cur[1]}, v{n[0]}")
        a(f"v_fmac_f32 v{n[1]}, v{li}, v{cur[0]}")
        cur=n
    PK=64
    for j in range(4):
        a(f"v_cvt_pk_bf16_f32 v{PK+j}, v{bur[2*j]}, v{bur[2*j+1]}")
        a(f"v_cvt_pk_bf16_f32 v{PK+4+j}, -v{bui[2*j]}, -v{bui[2*j+1]}")
    a(f"v_and_b32 v{t0}, 15, v{LANE}")
    a(f"v_mul_u32_u24 v{t0}, 72, v{t0}")
    a(f"v_bfe_u32 v{t1}, v{LANE}, 4, 1")
    a(f"v_lshl_add_u32 v{t0}, v{t1}, 5, v{t0}")
    a(f"v_lshrrev_b32 v{t1}, 5, v{LANE}")
    a(f"v_lshl_add_u32 v{t0}, v{t1}, 3, v{t0}")
    a("s_lshl_b32 s3, s66, 12")
    a(f"v_add_u32 v{t0}, s3, v{t0}")
    a(f"ds_write_b64 v{t0}, v[{PK}:{PK+1}]")
    a(f"ds_write_b64 v{t0}, v[{PK+2}:{PK+3}] offset:16")
    a(f"ds_write_b64 v{t0}, v[{PK+4}:{PK+5}] offset:{16*72}")
    a(f"ds_write_b64 v{t0}, v[{PK+6}:{PK+7}] offset:{16*72+16}")
    a(f"v_bfe_u32 v{t0}, v{LANE}, 2, 2")
    a(f"v_lshl_add_u32 v{t0}, v{t1}, 3, v{t0}")
    a(f"v_mul_u32_u24 v{t0}, 72, v{t0}")
    a(f"v_bfe_u32 v{t1}, v{LANE}, 4, 1")
    a(f"v_lshl_add_u32 v{t0}, v{t1}, 5, v{t0}")
    a(f"v_and_b32 v{t1}, 3, v{LANE}")
    a(f"v_lshl_add_u32 v{t0}, v{t1}, 3, v{t0}")
    a(f"v_add_u32 v{t0}, s3, v{t0}")
    a("s_waitcnt lgkmcnt(0)")
    for sidx in range(2):
        for t in range(2):
            a(f"ds_read_b64_tr_b16 v[{72+4*sidx+2*t}:{72+4*sidx+2*t+1}], v{t0} offset:{(16*sidx+4*t)*72}")
    a("s_lshl_b32 s3, s64, 2"); a("s_add_u32 s3, s3, s71"); a("s_mul_i32 s3, s3, 56")
    a("s_lshl_b32 s4, s65, 1"); a("s_add_u32 s4, s4, s69"); a("s_add_u32 s3, s3, s4")
    a("s_lshl_b32 s3, s3, 10"); a(f"s_add_u32 s3, s3, {H_OFF}"); a(f"s_add_u32 s4, s3, {28*1024}")
    a("s_waitcnt lgkmcnt(0)")
    a("buffer_store_dwordx4 v[72:75], v55, s[60:63], s3 offen")
    a("buffer_store_dwordx4 v[76:79], v55, s[60:63], s4 offen")
    stamp(a,7)
    if STAMP: a("s_waitcnt vmcnt(0)")
    stamp(a,8); stamp_rt(a,9)
    if STAMP: a("v_mov_b32 v4, s79"); a("s_nop 0"); a("v_readfirstlane_b32 s100, v4")
    stamp_flush(a,11,0,60,66)
    a.label("K1_END"); a("s_endpgm")
    return a, a.maxv+1

def gen_k2():
    a=Asm(); head(a,"k2_kernel")
    import os; a.strict=bool(os.environ.get("K2STRICT"))
    a("s_cmp_ge_u32 s2, 224"); a("s_cbranch_scc1 K2_END")
    stamp_rt(a,0); stamp(a,1)
    a("s_load_dwordx16 s[16:31], s[0:1], 0")
    a("s_load_dwordx16 s[32:47], s[0:1], 64")
    a("s_and_b32 s3, s2, 7"); a("s_lshr_b32 s4, s2, 3")
    a("s_lshl_b32 s5, s3, 2"); a("s_and_b32 s6, s4, 3"); a("s_add_u32 s64, s5, s6")
    a("s_lshr_b32 s65, s4, 2")
    a("v_lshrrev_b32 v2, 6, v0")
    a("v_and_b32 v1, 63, v0")
    a("v_readfirstlane_b32 s66, v2")
    LANE=1
    t0,t1,t2,t3=2,3,4,5
    oF=6; oD=7; oD2=8; rA=[9,10,11,12]
    EX=14
    AF=[32,40]
    ACC=[48,64,80,96]
    BF=112
    D=12
    a("s_waitcnt lgkmcnt(0)")
    srd(a,48,40,41,1792*896)
    srd(a,60,46,47,WS_SIZE)
    srd(a,52,16,17,2048*896)
    srd(a,68,42,43,2048*448*4)
    a("s_cmp_eq_u32 s66, 4")
    a("s_cselect_b32 s56, s26, s28"); a("s_cselect_b32 s57, s27, s29")
    a("s_and_b32 s57, s57, 0xffff"); a(f"s_mov_b32 s58, {448*896}"); a("s_mov_b32 s59, 0x20000")
    a(f"v_lshlrev_b32 v{oF}, 4, v{LANE}")
    a("s_mul_i32 s67, s66, 24576")
    a("s_cmp_ge_u32 s66, 4"); a("s_cbranch_scc1 K2_SSM")
    a(f"v_and_b32 v{t0}, 15, v{LANE}")
    a("s_lshl_b32 s3, s65, 6")
    a(f"v_lshl_add_u32 v{t0}, v{t0}, 2, s3")
    a(f"v_lshlrev_b32 v{t1}, 1, v{t0}")
    a(f"global_load_dwordx2 v[30:31], v{t1}, s[32:33]")
    for g in range(4):
        a(f"v_lshrrev_b32 v{t2}, 4, v{LANE}")
        a(f"v_lshlrev_b32 v{t2}, 4, v{t2}")
        a(f"s_lshl_b32 s3, s66, 2"); a(f"s_add_u32 s3, s3, {g}")
        a(f"v_add_u32 v{t2}, s3, v{t2}")
        a(f"v_and_b32 v{t3}, 31, v{t2}")
        tau(a,208,t3,209)
        a(f"v_and_b32 v209, 32, v{t2}")
        a("v_or_b32 v208, v208, v209")
        a("s_lshl_b32 s3, s64, 6")
        a("v_add_u32 v208, s3, v208")
        a("s_movk_i32 s4, 896")
        a("v_mul_lo_u32 v209, v208, s4")
        a(f"v_add_u32 v209, v209, v{t1}")
        a(f"buffer_load_dwordx2 v[{EX+4*g}:{EX+4*g+1}], v209, s[52:55], 0 offen")
        a(f"v_lshlrev_b32 v{212+g}, 1, v209")
        a("s_lshr_b32 s3, s64, 1"); a("s_mul_i32 s3, s3, 7"); a("s_add_u32 s3, s3, s65"); a("s_lshl_b32 s3, s3, 7")
        a("s_and_b32 s4, s64, 1"); a("s_lshl_b32 s4, s4, 6"); a("s_add_u32 s3, s3, s4")
        a(f"v_add_u32 v209, s3, v{t2}")
        a(f"v_bfe_u32 v210, v{t2}, 1, 3")
        a(f"v_bfe_u32 v211, v{t0}, 3, 3")
        a("v_xor_b32 v210, v210, v211")
        a("v_lshlrev_b32 v210, 4, v210")
        a("v_lshl_add_u32 v209, v209, 7, v210")
        a(f"v_and_b32 v210, 4, v{t0}")
        a("v_lshl_add_u32 v209, v210, 1, v209")
        a(f"buffer_load_dwordx2 v[{EX+4*g+2}:{EX+4*g+3}], v209, s[60:63], 0 offen")
    NPRE=9
    def mainloop(role):
        a.vm=["pre"]*NPRE if role=="F" else []
        a.lg=[]
        if role=="F":
            a(f"v_lshrrev_b32 v{t0}, 3, v{LANE}")
            a(f"v_bfe_u32 v{t1}, v{LANE}, 4, 1")
            a(f"v_lshlrev_b32 v{t1}, 2, v{t1}")
            a(f"v_and_b32 v{t2}, 7, v{LANE}")
            a(f"v_xor_b32 v{t1}, v{t1}, v{t2}")
            a("s_movk_i32 s4, 896")
            a(f"v_mul_lo_u32 v{t0}, v{t0}, s4")
            a(f"v_lshl_add_u32 v{oD}, v{t1}, 4, v{t0}")
            a("s_lshl_b32 s3, s65, 7")
            a(f"v_add_u32 v{oD}, s3, v{oD}")
            a(f"s_mul_i32 s72, s66, {448*896}")
            a(f"v_bfe_u32 v{t0}, v{LANE}, 2, 2")
            a(f"v_lshrrev_b32 v{t1}, 5, v{LANE}")
            a(f"v_lshl_add_u32 v{t1}, v{t1}, 2, v{t0}")
            a(f"v_lshlrev_b32 v{t1}, 7, v{t1}")
            a(f"v_bfe_u32 v{t0}, v{LANE}, 3, 1")
            a(f"v_lshl_add_u32 v{t1}, v{t0}, 6, v{t1}")
            a(f"v_bfe_u32 v{t0}, v{LANE}, 4, 1")
            a(f"v_lshl_add_u32 v{t1}, v{t0}, 5, v{t1}")
            a(f"v_and_b32 v{t0}, 3, v{LANE}")
            a(f"v_lshl_add_u32 v{t1}, v{t0}, 3, v{t1}")
            a(f"v_add_u32 v{rA[0]}, s67, v{t1}")
            a(f"v_xor_b32 v{t1}, 64, v{t1}")
            a(f"v_add_u32 v{rA[1]}, s67, v{t1}")
            a("s_lshl_b32 s3, s64, 1"); a("s_mul_i32 s3, s3, 112"); a("s_mul_i32 s4, s66, 28"); a("s_add_u32 s3, s3, s4")
            a("s_lshl_b32 s3, s3, 10"); a(f"s_add_u32 s73, s3, {A_OFF}"); a(f"s_add_u32 s74, s73, {112*1024}")
        else:
            a(f"v_lshrrev_b32 v{t0}, 3, v{LANE}")
            a("s_lshl_b32 s3, s65, 6")
            a(f"v_add_u32 v{t0}, s3, v{t0}")
            a("s_movk_i32 s4, 896")
            a(f"v_mul_lo_u32 v{t0}, v{t0}, s4")
            a(f"v_lshrrev_b32 v{t1}, 4, v{LANE}")
            a(f"v_and_b32 v{t2}, 7, v{LANE}")
            a(f"v_xor_b32 v{t1}, v{t1}, v{t2}")
            a(f"v_lshl_add_u32 v{oD}, v{t1}, 4, v{t0}")
            a(f"v_xor_b32 v{t1}, 4, v{t1}")
            a(f"v_lshl_add_u32 v{oD2}, v{t1}, 4, v{t0}")
            a(f"v_and_b32 v{t0}, 31, v{LANE}")
            a(f"v_lshrrev_b32 v{t1}, 5, v{LANE}")
            a(f"v_bfe_u32 v{t2}, v{t0}, 1, 3")
            a(f"v_xor_b32 v{t2}, v{t2}, v{t1}")
            a(f"v_lshlrev_b32 v{t2}, 4, v{t2}")
            a(f"v_lshl_add_u32 v{t2}, v{t0}, 7, v{t2}")
            for ks in range(4):
                a(f"v_xor_b32 v{t3}, {ks*32}, v{t2}")
                a(f"v_add_u32 v{rA[ks]}, s67, v{t3}")
            a("s_lshl_b32 s3, s64, 1"); a("s_mul_i32 s3, s3, 56"); a("s_sub_u32 s4, s66, 4"); a("s_mul_i32 s4, s4, 28"); a("s_add_u32 s3, s3, s4")
            a("s_lshl_b32 s3, s3, 10"); a(f"s_add_u32 s73, s3, {H_OFF}"); a(f"s_add_u32 s74, s73, {56*1024}")
        def ld_frag(s):
            b=BF+(s%D)*8
            if s%4==0:
                a(f"s_add_u32 s75, s73, {s*1024}"); a(f"s_add_u32 s76, s74, {s*1024}")
            a(f"buffer_load_dwordx4 v[{b}:{b+3}], v{oF}, s[60:63], s75 offen offset:{(s%4)*1024}"); a.vm_issue(("b",s))
            a(f"buffer_load_dwordx4 v[{b+4}:{b+7}], v{oF}, s[60:63], s76 offen offset:{(s%4)*1024}"); a.vm_issue(("b",s))
        def dmaF(s):
            a(f"s_add_u32 m0, s67, {(s%D)*2048}")
            a(f"s_add_u32 s77, s72, {s*16*896}"); a(f"s_add_u32 s78, s72, {s*16*896+6144}")
            a(f"buffer_load_dwordx4 v{oD}, s[48:51], s77 offen lds"); a.vm_issue(("w",s))
            a(f"buffer_load_dwordx4 v{oD}, s[48:51], s78 offen offset:1024 lds"); a.vm_issue(("w",s))
        def dmaS(cs,pair):
            for e in (2*pair,2*pair+1):
                a(f"s_add_u32 m0, s67, {(cs%3)*8192+(e//4)*4096}")
                a(f"s_mov_b32 s77, {cs*128+e*7168-(e%4)*1024}")
                o = oD if e%2==0 else oD2
                a(f"buffer_load_dwordx4 v{o}, s[56:59], s77 offen offset:{(e%4)*1024} lds"); a.vm_issue(("w",cs*4))
        def reads(s):
            F=AF[s&1]
            if role=="F":
                o=(s%D)*2048
                for dt in range(2):
                    a(f"ds_read_b64_tr_b16 v[{F+4*dt}:{F+4*dt+1}], v{rA[dt]} offset:{o}"); a.lg_issue(s)
                    a(f"ds_read_b64_tr_b16 v[{F+4*dt+2}:{F+4*dt+3}], v{rA[dt]} offset:{o+1024}"); a.lg_issue(s)
            else:
                o=((s//4)%3)*8192
                for dt in range(2):
                    a(f"ds_read_b128 v[{F+4*dt}:{F+4*dt+3}], v{rA[s%4]} offset:{o+dt*4096}"); a.lg_issue(s)
        if role=="F":
            for s in range(D): dmaF(s); ld_frag(s)
        else:
            for s in range(D):
                dmaS(s//4, s%4); ld_frag(s)
        wtag = (lambda s: ("w",s)) if role=="F" else (lambda s: ("w",(s//4)*4))
        if role=="F":
            a.vm_wait("pre")
            a("v_lshlrev_b32 v208, 16, v30"); a("v_and_b32 v209, 0xffff0000, v30"); a("v_lshlrev_b32 v210, 16, v31"); a("v_and_b32 v211, 0xffff0000, v31")
            for g in range(4):
                xr=EX+4*g; nr=xr+2; T=216+8*g
                a(f"v_lshlrev_b32 v{T}, 16, v{xr}"); a(f"v_and_b32 v{T+1}, 0xffff0000, v{xr}")
                a(f"v_lshlrev_b32 v{T+2}, 16, v{xr+1}"); a(f"v_and_b32 v{T+3}, 0xffff0000, v{xr+1}")
                a(f"v_lshlrev_b32 v{T+4}, 16, v{nr}"); a(f"v_and_b32 v{T+5}, 0xffff0000, v{nr}")
                a(f"v_lshlrev_b32 v{T+6}, 16, v{nr+1}"); a(f"v_and_b32 v{T+7}, 0xffff0000, v{nr+1}")
                for k in range(4):
                    a(f"v_mul_f32 v{T+4+k}, v{T+4+k}, v{208+k}")
                    a(f"v_cvt_pk_bf16_f32 v{T+4+k}, 0, v{T+4+k}")
        a.vm_wait(wtag(0))
        stamp(a,2)
        if STAMP: a("s_waitcnt lgkmcnt(0)")
        reads(0)
        for s in range(28):
            F=AF[s&1]; b=BF+(s%D)*8
            if s<27:
                a.vm_wait(wtag(s+1)); reads(s+1)
            a.vm_wait(("b",s))
            a.lg_wait(s)
            for dt in range(2):
                for tt in range(2):
                    d=ACC[dt*2+tt]; c="0" if s==0 else f"v[{d}:{d+15}]"
                    a(f"v_mfma_f32_32x32x16_bf16 v[{d}:{d+15}], v[{F+4*dt}:{F+4*dt+3}], v[{b+4*tt}:{b+4*tt+3}], {c}")
            if role=="F":
                if s+D<28: dmaF(s+D); ld_frag(s+D)
            else:
                if s>=3:
                    cs=(s-3)//4; pair=(s-3)%4
                    if cs+3<7: dmaS(cs+3,pair)
                if s+D<28: ld_frag(s+D)
        stamp(a,3)
        a(f"v_and_b32 v{t0}, 31, v{LANE}")
        a(f"v_mul_u32_u24 v{t0}, 272, v{t0}")
        a(f"v_lshrrev_b32 v{t1}, 5, v{LANE}")
        a(f"v_lshl_add_u32 v{t0}, v{t1}, 4, v{t0}")
        a(f"v_add_u32 v{t0}, s67, v{t0}")
        for dt in range(2):
            for tt in range(2):
                d=ACC[dt*2+tt]
                for q in range(4):
                    a(f"ds_write_b128 v{t0}, v[{d+4*q}:{d+4*q+3}] offset:{tt*32*272+dt*128+q*32}")
        a("s_waitcnt lgkmcnt(0)")
        stamp(a,4)
        a("s_barrier")
        stamp(a,5)
        if role=="S":
            stamp(a,6); stamp_rt(a,7)
            stamp_flush(a,8,1<<19,60,66)
        if STAMP: a("s_waitcnt lgkmcnt(0)")
    mainloop("F")
    a(f"v_lshrrev_b32 v{t0}, 4, v{LANE}")
    a(f"v_lshlrev_b32 v{t0}, 4, v{t0}")
    a("s_lshl_b32 s3, s66, 2")
    a(f"v_add_u32 v{t0}, s3, v{t0}")
    a(f"v_mul_u32_u24 v{t0}, 272, v{t0}")
    a(f"v_and_b32 v{t1}, 15, v{LANE}")
    a(f"v_lshl_add_u32 v{t0}, v{t1}, 4, v{t0}")
    a(f"v_add_u32 v{t1}, {3*24576}, v{t0}")
    PB=48
    for g in range(4):
        for p in range(6):
            r=PB+(g*6+p)*4
            base = t0 if p<3 else t1
            a(f"ds_read_b128 v[{r}:{r+3}], v{base} offset:{(p%3)*24576+g*272}"); a.lg_issue(("p",g))
    for g in range(4):
        a.lg_wait(("p",g))
        r=PB+g*24; T=216+8*g
        for k in range(4):
            f=r+k
            a(f"v_add_f32 v{f}, v{f}, v{f+4}")
            a(f"v_add_f32 v{f+8}, v{f+8}, v{f+12}")
            a(f"v_add_f32 v{f+16}, v{f+16}, v{f+20}")
            a(f"v_add_f32 v{f}, v{f}, v{f+8}")
            a(f"v_add_f32 v{f+16}, v{f+16}, v{T+4+k}")
            a(f"v_cvt_pk_bf16_f32 v{f}, 0, v{f}")
            a(f"v_mul_f32 v{f+4}, {NLOG2E}, v{f}")
            a(f"v_exp_f32 v{f+4}, v{f+4}")
            a(f"v_add_f32 v{f+4}, 1.0, v{f+4}")
            a(f"v_rcp_f32 v{f+4}, v{f+4}")
            a(f"v_mul_f32 v{f}, v{f}, v{f+4}")
            a(f"v_cvt_pk_bf16_f32 v{f}, 0, v{f}")
            a(f"v_fma_f32 v{f+8}, v{f}, v{f+16}, v{T+k}")
        a(f"buffer_store_dwordx4 v[{r+8}:{r+11}], v{212+g}, s[68:71], 0 offen")
    if STAMP: a("s_waitcnt vmcnt(0)")
    stamp(a,6); stamp_rt(a,7)
    stamp_flush(a,8,1<<19,60,66)
    a("s_endpgm")
    a.label("K2_SSM")
    mainloop("S")
    a.label("K2_END"); a("s_endpgm")
    return a, a.maxv+1

def main(out):
    k0,v0=gen_k0(); k1,v1=gen_k1(); k2,v2=gen_k2()
    hdr=open("cdna_kernels/"+NAME+".s.ref").read().split("; Override launch")[0]
    s=hdr
    s+="; @launch kernel=k0_kernel grid=(256,1,1) block=(256,1,1) lds=0\n"
    s+="; @launch kernel=k1_kernel grid=(224,1,1) block=(512,1,1) lds=163840\n"
    s+="; @launch kernel=k2_kernel grid=(224,1,1) block=(384,1,1) lds=147456\n"
    s+='.amdgcn_target "amdgcn-amd-amdhsa--gfx950"\n.text\n'
    s+=k0.text()+k1.text()+k2.text()
    s+='.section .rodata,"a"\n'
    s+=kd("k0_kernel",v0)+kd("k1_kernel",v1)+kd("k2_kernel",v2)
    open(out,"w").write(s)
    print("vgprs",v0,v1,v2, "bytes",len(s))
if __name__=="__main__":
    main(sys.argv[1] if len(sys.argv)>1 else "cdna_kernels/"+NAME+".s")
```

```python
import sys
from asmlib import *

NAME="recurrent_scan__ssm_conv_s5__swiglu_ffn__prompt"
XN_OFF=0
A_OFF=2<<20
H_OFF=10<<20
T_OFF=14<<20
WS_SIZE=16<<20
LOG2E=0x3fb8aa3b
NLOG2E=0xbfb8aa3b
INV2PI=0x3e22f983

def srd(a, d, lo, hi, size):
    a(f"s_mov_b32 s{d}, s{lo}")
    a(f"s_and_b32 s{d+1}, s{hi}, 0xffff")
    a(f"s_mov_b32 s{d+2}, {size}")
    a(f"s_mov_b32 s{d+3}, 0x20000")

def kd(name, vgpr, sgpr=102):
    acc=(vgpr+3)//4*4
    return f""".p2align 6
.amdhsa_kernel {name}
  .amdhsa_next_free_vgpr {vgpr}
  .amdhsa_next_free_sgpr {sgpr}
  .amdhsa_accum_offset {acc}
  .amdhsa_group_segment_fixed_size 0
  .amdhsa_kernarg_size 128
  .amdhsa_user_sgpr_count 2
  .amdhsa_user_sgpr_kernarg_segment_ptr 1
  .amdhsa_system_sgpr_workgroup_id_x 1
  .amdhsa_float_denorm_mode_32 3
.end_amdhsa_kernel
"""

import os
STAMP=bool(os.environ.get("STAMP"))
import struct
PERT=os.environ.get("PERT"); PERT=hex(struct.unpack("<I",struct.pack("<f",float(PERT)))[0]) if PERT else None
NOROUND=bool(os.environ.get("NOROUND"))
ST_OFF=15<<20
def stamp(a,i):
    if STAMP: a(f"s_memtime s[{80+2*i}:{81+2*i}]")
def stamp_rt(a,i):
    if STAMP: a(f"s_memrealtime s[{80+2*i}:{81+2*i}]")
def stamp_flush(a,n,koff,wsrd,wreg):
    if not STAMP: return
    a("s_waitcnt lgkmcnt(0)")
    a(f"s_lshl_b32 s3, s2, 3"); a(f"s_add_u32 s3, s3, s{wreg}"); a("s_lshl_b32 s3, s3, 6"); a(f"s_add_u32 s3, s3, {ST_OFF+koff}")
    a("v_mov_b32 v2, 0")
    a("s_mov_b64 exec, 1")
    for i in range(n):
        a(f"v_mov_b32 v3, s{80+2*i}")
        a(f"buffer_store_dword v3, v2, s[{wsrd}:{wsrd+3}], s3 offen offset:{4*i}")
    a("s_mov_b64 exec, -1")
def head(a,name):
    a.raw(f".globl {name}\n.p2align 8\n.type {name},@function\n{name}:")

def tau_inv(a, dst, t, tmp):
    a(f"v_and_b32 v{dst}, 3, v{t}")
    a(f"v_bfe_u32 v{tmp}, v{t}, 2, 2")
    a(f"v_lshl_or_b32 v{dst}, v{tmp}, 3, v{dst}")
    a(f"v_bfe_u32 v{tmp}, v{t}, 4, 1")
    a(f"v_lshl_or_b32 v{dst}, v{tmp}, 2, v{dst}")
def tau(a, dst, r, tmp):
    a(f"v_and_b32 v{dst}, 3, v{r}")
    a(f"v_bfe_u32 v{tmp}, v{r}, 3, 2")
    a(f"v_lshl_or_b32 v{dst}, v{tmp}, 2, v{dst}")
    a(f"v_bfe_u32 v{tmp}, v{r}, 2, 1")
    a(f"v_lshl_or_b32 v{dst}, v{tmp}, 4, v{dst}")

def allreduce32(a, v, t):
    a(f"v_add_f32_dpp v{v}, v{v}, v{v} quad_perm:[1,0,3,2] row_mask:0xf bank_mask:0xf")
    a(f"v_add_f32_dpp v{v}, v{v}, v{v} quad_perm:[2,3,0,1] row_mask:0xf bank_mask:0xf")
    a(f"v_add_f32_dpp v{v}, v{v}, v{v} row_half_mirror row_mask:0xf bank_mask:0xf")
    a(f"v_add_f32_dpp v{v}, v{v}, v{v} row_mirror row_mask:0xf bank_mask:0xf")
    a(f"v_mov_b32 v{t}, v{v}")
    a(f"v_permlane16_swap_b32 v{v}, v{t}")
    a(f"v_add_f32 v{v}, v{v}, v{t}")

def gen_k0():
    a=Asm(); head(a,"k0_kernel")
    a("s_cmp_ge_u32 s2, 256"); a("s_cbranch_scc1 K0_END")
    a("s_load_dwordx2 s[4:5], s[0:1], 0")
    a("s_load_dwordx2 s[6:7], s[0:1], 120")
    a("v_and_b32 v1, 63, v0")
    a("v_lshrrev_b32 v2, 5, v0")
    a("s_lshl_b32 s3, s2, 3")
    a("v_add_u32 v2, s3, v2")
    a("v_and_b32 v3, 31, v0")
    a("s_movk_i32 s16, 896")
    a("v_mul_lo_u32 v4, v2, s16")
    a("v_lshl_add_u32 v4, v3, 4, v4")
    for i in range(8): a(f"v_mov_b32 v{10+i}, 0")
    a("s_waitcnt lgkmcnt(0)")
    srd(a,8,4,5,2048*896); srd(a,12,6,7,WS_SIZE)
    a("v_cmp_gt_u32 vcc, 28, v3")
    a("s_and_saveexec_b64 s[18:19], vcc")
    a("buffer_load_dwordx4 v[10:13], v4, s[8:11], 0 offen")
    a("buffer_load_dwordx4 v[14:17], v4, s[8:11], 0 offen offset:448")
    a("s_mov_b64 s[20:21], exec")
    a("s_mov_b64 exec, s[18:19]")
    a("s_cmp_ge_u32 s2, 28"); a("s_cbranch_scc1 K0_NOZ")
    a("s_lshl_b32 s3, s2, 12")
    a(f"s_add_u32 s3, s3, {T_OFF}")
    a("v_lshlrev_b32 v5, 4, v0")
    for i in range(4): a(f"v_mov_b32 v{40+i}, 0")
    a("buffer_store_dwordx4 v[40:43], v5, s[12:15], s3 offen")
    a.label("K0_NOZ")
    a("v_and_b32 v5, 31, v2")
    tau_inv(a,6,5,7)
    a("v_and_b32 v7, 0x60, v2")
    a("v_or_b32 v6, v6, v7")
    a("v_lshrrev_b32 v7, 7, v2")
    a("v_mul_u32_u24 v7, 7, v7")
    a("v_bfe_u32 v8, v6, 1, 3")
    for k,(jr) in enumerate((0,28)):
        a(f"v_add_u32 v9, {jr}, v3")
        a(f"v_lshrrev_b32 v18, 3, v9")
        a(f"v_add_u32 v18, v18, v7")
        a(f"v_lshl_add_u32 v18, v18, 7, v6")
        a(f"v_and_b32 v9, 7, v9")
        a(f"v_xor_b32 v9, v9, v8")
        a(f"v_lshlrev_b32 v9, 4, v9")
        a(f"v_lshl_add_u32 v{44+k}, v18, 7, v9")
    a("s_waitcnt vmcnt(0)")
    for i in range(8):
        a(f"v_lshlrev_b32 v{20+2*i}, 16, v{10+i}")
        a(f"v_and_b32 v{21+2*i}, 0xffff0000, v{10+i}")
    a("v_add_f32 v36, v20, v21"); a("v_add_f32 v37, v22, v23")
    for i in range(2,8,2):
        a(f"v_add_f32 v36, v36, v{20+2*i}"); a(f"v_add_f32 v37, v37, v{22+2*i}")
        a(f"v_add_f32 v36, v36, v{21+2*i}"); a(f"v_add_f32 v37, v37, v{23+2*i}")
    a("v_add_f32 v36, v36, v37")
    allreduce32(a,36,37)
    a("v_mul_f32 v36, 0x3b124925, v36")
    a("v_mov_b32 v38, 0"); a("v_mov_b32 v39, 0")
    a("s_mov_b64 exec, s[20:21]")
    for i in range(16):
        a(f"v_sub_f32 v37, v{20+i}, v36")
        a(f"v_fmac_f32 v{38+(i&1)}, v37, v37")
    a("s_mov_b64 exec, s[18:19]")
    a("v_add_f32 v38, v38, v39")
    allreduce32(a,38,37)
    a("v_mul_f32 v38, 0x3b124925, v38")
    a("v_cvt_pk_bf16_f32 v36, 0, v36")
    a("v_cvt_pk_bf16_f32 v38, 0, v38")
    a("v_add_f32 v38, 0x3727c5ac, v38")
    a("v_cvt_pk_bf16_f32 v38, 0, v38")
    a("v_sqrt_f32 v38, v38")
    a("v_cvt_pk_bf16_f32 v38, 0, v38")
    a("v_rcp_f32 v39, v38")
    for i in range(16):
        r=20+i
        a(f"v_sub_f32 v{r}, v{r}, v36")
        a(f"v_cvt_pk_bf16_f32 v{r}, 0, v{r}")
        a(f"v_mul_f32 v37, v{r}, v39")
        a(f"v_fma_f32 v{r}, -v37, v38, v{r}")
        a(f"v_fma_f32 v{r}, v{r}, v39, v37")
    for i in range(8):
        a(f"v_cvt_pk_bf16_f32 v{10+i}, v{20+2*i}, v{21+2*i}")
    a("s_mov_b64 exec, s[20:21]")
    a("buffer_store_dwordx4 v[10:13], v44, s[12:15], 0 offen")
    a("buffer_store_dwordx4 v[14:17], v45, s[12:15], 0 offen")
    a.label("K0_END"); a("s_endpgm")
    return a, 48

XS=0; BS=49152; WSL=73728; SCR=155648
def gen_k1():
    a=Asm(); head(a,"k1_kernel")
    a("s_cmp_ge_u32 s2, 224"); a("s_cbranch_scc1 K1_END")
    stamp_rt(a,0); stamp(a,1)
    a("s_load_dwordx16 s[16:31], s[0:1], 0")
    a("s_load_dwordx16 s[32:47], s[0:1], 64")
    a("s_and_b32 s3, s2, 7"); a("s_lshr_b32 s4, s2, 3")
    a("s_lshr_b32 s5, s3, 1"); a("s_lshl_b32 s5, s5, 2"); a("s_and_b32 s6, s4, 3"); a("s_add_u32 s64, s5, s6")
    a("s_and_b32 s5, s3, 1"); a("s_mul_i32 s5, s5, 7"); a("s_lshr_b32 s6, s4, 2"); a("s_add_u32 s65, s5, s6")
    a("v_lshrrev_b32 v2, 6, v0")
    a("v_and_b32 v1, 63, v0")
    a("v_readfirstlane_b32 s66, v2")
    a("s_and_b32 s67, s66, 1")
    a("s_lshr_b32 s68, s66, 1")
    a("s_lshr_b32 s69, s68, 1")
    a("s_and_b32 s70, s68, 1")
    a("s_lshl_b32 s71, s67, 1"); a("s_add_u32 s71, s71, s70")
    a("s_xor_b32 s72, s71, 1")
    LANE=1
    vX0=2; vX1=6; vB=10; vW=14; vW2=15; oX=16; oB=17; oW=18
    vseg=19; lr,li,cr,ci,l8r,l8i,lcr,lci,pwr,pwi=range(20,30)
    t0,t1,t2,t3=30,31,152,153
    FR=[32,52]
    aG=[72,88]; aU=[104,120]; aS=136
    a(f"v_and_b32 v{t0}, 15, v{LANE}")
    a("s_lshl_b32 s3, s65, 5"); a("s_lshl_b32 s4, s69, 4"); a("s_add_u32 s3, s3, s4")
    a(f"v_add_u32 v{t0}, s3, v{t0}")
    a(f"v_lshlrev_b32 v{t0}, 1, v{t0}")
    a("s_waitcnt lgkmcnt(0)")
    a(f"global_load_ushort v154, v{t0}, s[18:19]"); a.vm_issue("p")
    a(f"global_load_ushort v155, v{t0}, s[20:21]"); a.vm_issue("p")
    a(f"global_load_ushort v156, v{t0}, s[30:31]"); a.vm_issue("p")
    srd(a,48,36,37,448*3584); srd(a,52,38,39,448*3584); srd(a,60,46,47,WS_SIZE)
    a("s_and_b32 s3, s66, 2"); a("s_cmp_eq_u32 s3, 0")
    a("s_cselect_b32 s56, s22, s24"); a("s_cselect_b32 s57, s23, s25")
    a("s_and_b32 s57, s57, 0xffff"); a(f"s_mov_b32 s58, {448*896}"); a("s_mov_b32 s59, 0x20000")
    a("s_lshl_b32 s3, s66, 11")
    a(f"v_lshlrev_b32 v{oX}, 4, v{LANE}")
    a(f"v_add_u32 v{oX}, s3, v{oX}")
    a(f"v_lshrrev_b32 v{t0}, 3, v{LANE}")
    a("s_lshl_b32 s3, s66, 3")
    a(f"v_add_u32 v{t1}, s3, v{t0}")
    a(f"v_bfe_u32 v{t1}, v{t1}, 1, 3")
    a(f"v_and_b32 v{t2}, 7, v{LANE}")
    a(f"v_xor_b32 v{t1}, v{t1}, v{t2}")
    a("s_lshl_b32 s3, s65, 5"); a("s_lshr_b32 s4, s66, 2"); a("s_lshl_b32 s4, s4, 4"); a("s_add_u32 s3, s3, s4")
    a("s_lshl_b32 s4, s67, 3"); a("s_add_u32 s3, s3, s4")
    a(f"v_add_u32 v{t0}, s3, v{t0}")
    a("s_movk_i32 s4, 896")
    a(f"v_mul_lo_u32 v{t0}, v{t0}, s4")
    a(f"v_lshl_add_u32 v{oB}, v{t1}, 4, v{t0}")
    a(f"v_lshrrev_b32 v{t0}, 4, v{LANE}")
    a(f"v_and_b32 v{t1}, 15, v{LANE}")
    a(f"v_lshlrev_b32 v{t2}, 2, v{t0}")
    a(f"v_xor_b32 v{t1}, v{t1}, v{t2}")
    a("s_lshl_b32 s3, s66, 2")
    a(f"v_add_u32 v{t0}, s3, v{t0}")
    a("s_movk_i32 s4, 3584")
    a(f"v_mul_lo_u32 v{t0}, v{t0}, s4")
    a(f"v_lshl_add_u32 v{oW}, v{t1}, 4, v{t0}")
    a("s_lshl_b32 s3, s65, 8")
    a(f"v_add_u32 v{oW}, s3, v{oW}")
    a("s_mul_i32 s73, s64, 7"); a("s_lshl_b32 s73, s73, 14")
    a("s_lshl_b32 s74, s66, 11")
    a("s_lshl_b32 s75, s66, 10")
    def dma_xb(J):
        slot=J%3
        a(f"s_add_u32 m0, s74, {XS+slot*16384}")
        a(f"s_add_u32 s76, s73, {J*16384}")
        a(f"buffer_load_dwordx4 v{oX}, s[60:63], s76 offen lds"); a.vm_issue(("x",J))
        a(f"buffer_load_dwordx4 v{oX}, s[60:63], s76 offen offset:1024 lds"); a.vm_issue(("x",J))
        a(f"s_add_u32 m0, s75, {BS+slot*8192}")
        a(f"s_movk_i32 s76, {J*128}")
        a(f"buffer_load_dwordx4 v{oB}, s[56:59], s76 offen lds"); a.vm_issue(("x",J))
    def dma_w(i):
        slot=i%5
        a(f"s_add_u32 m0, s75, {WSL+slot*16384}")
        a(f"s_mov_b32 s77, {i*32*3584}")
        a(f"buffer_load_dwordx4 v{oW}, s[48:51], s77 offen lds"); a.vm_issue(("w",i))
        a(f"s_add_u32 m0, s75, {WSL+slot*16384+8192}")
        a(f"buffer_load_dwordx4 v{oW}, s[52:55], s77 offen lds"); a.vm_issue(("w",i))
    dma_xb(0); dma_w(0); dma_w(1); dma_xb(1); dma_w(2); dma_w(3); dma_xb(2); dma_w(4)
    a(f"v_and_b32 v{t0}, 31, v{LANE}")
    a(f"v_lshrrev_b32 v{t1}, 5, v{LANE}")
    a(f"v_bfe_u32 v{t2}, v{t0}, 1, 3")
    a(f"v_xor_b32 v{t2}, v{t2}, v{t1}")
    a(f"v_lshlrev_b32 v{t2}, 4, v{t2}")
    a(f"v_lshl_add_u32 v{t2}, v{t0}, 7, v{t2}")
    a("s_lshl_b32 s3, s71, 12"); a("s_lshl_b32 s4, s72, 12"); a("s_lshl_b32 s5, s69, 12"); a(f"s_add_u32 s5, s5, {BS}")
    for ks in range(4):
        a(f"v_xor_b32 v{t3}, {ks*32}, v{t2}")
        a(f"v_add_u32 v{vX0+ks}, s3, v{t3}")
        a(f"v_add_u32 v{vX1+ks}, s4, v{t3}")
        a(f"v_add_u32 v{vB+ks}, s5, v{t3}")
    a(f"v_bfe_u32 v{t0}, v{LANE}, 2, 2")
    a(f"v_lshl_add_u32 v{t2}, v{t1}, 3, v{t0}")
    a(f"v_lshlrev_b32 v{t2}, 8, v{t2}")
    a(f"v_xor_b32 v{t0}, s68, v{t0}")
    a(f"v_lshl_add_u32 v{t2}, v{t0}, 6, v{t2}")
    a(f"v_bfe_u32 v{t0}, v{LANE}, 4, 1")
    a(f"v_lshl_add_u32 v{t2}, v{t0}, 5, v{t2}")
    a(f"v_and_b32 v{t0}, 3, v{LANE}")
    a(f"v_lshl_add_u32 v{t2}, v{t0}, 3, v{t2}")
    a(f"v_add_u32 v{vW}, {WSL}, v{t2}")
    a(f"v_add_u32 v{vW2}, {WSL+65536}, v{t2}")
    a.vm_wait("p")
    a("v_lshlrev_b32 v154, 16, v154"); a("v_lshlrev_b32 v155, 16, v155"); a("v_lshlrev_b32 v156, 16, v156")
    a(f"v_mul_f32 v156, {LOG2E}, v156")
    a("v_exp_f32 v156, v156")
    a("v_cvt_pk_bf16_f32 v156, 0, v156")
    a("v_mul_f32 v157, v156, v154")
    a(f"v_mul_f32 v157, {LOG2E}, v157")
    a("v_mul_f32 v158, v156, v155")
    a(f"v_mul_f32 v158, {INV2PI}, v158")
    def cpow(dr,di,n):
        a(f"v_mul_f32 v159, {n}, v157")
        a(f"v_mul_f32 v160, {n}, v158")
        a(f"v_exp_f32 v159, v159")
        a(f"v_rndne_f32 v161, v160")
        a(f"v_sub_f32 v160, v160, v161")
        a(f"v_cos_f32 v{dr}, v160")
        a(f"v_sin_f32 v{di}, v160")
        a(f"v_mul_f32 v{dr}, v{dr}, v159")
        a(f"v_mul_f32 v{di}, v{di}, v159")
    cpow(lr,li,"1.0"); cpow(l8r,l8i,"0x41000000"); cpow(lcr,lci,"0x43000000")
    a(f"v_lshrrev_b32 v{vseg}, 4, v{LANE}")
    a("s_lshl_b32 s3, s71, 2")
    a(f"v_add_u32 v{vseg}, s3, v{vseg}")
    a(f"v_lshlrev_b32 v162, 3, v{vseg}")
    a(f"v_cvt_f32_u32 v162, v162")
    cpow(pwr,pwi,"v162")
    a(f"v_add_f32 v159, -1.0, v{lr}")
    a("v_mul_f32 v160, v154, v154")
    a("v_fmac_f32 v160, v155, v155")
    a("v_rcp_f32 v160, v160")
    a("v_add_f32 v160, v160, v160")
    a("v_mul_f32 v161, v159, v154")
    a(f"v_fmac_f32 v161, v{li}, v155")
    a(f"v_mul_f32 v{cr}, v161, v160")
    a(f"v_mul_f32 v161, v{li}, v154")
    a(f"v_fma_f32 v161, -v159, v155, v161")
    a(f"v_mul_f32 v{ci}, v161, v160")

    def reads(s):
        F=FR[s&1]; i=s//2; J=s//4; ks=s%4; k2=s%2
        xs=(J%3)*16384; bs=(J%3)*8192; slot=i%5
        wb=vW if slot<4 else vW2
        wo=(slot%4)*16384+k2*4096
        a(f"ds_read_b64_tr_b16 v[{F+8}:{F+9}], v{wb} offset:{wo}"); a.lg_issue(s)
        a(f"ds_read_b64_tr_b16 v[{F+10}:{F+11}], v{wb} offset:{wo+1024}"); a.lg_issue(s)
        a(f"ds_read_b128 v[{F}:{F+3}], v{vX0+ks} offset:{xs}"); a.lg_issue(s)
        a(f"ds_read_b128 v[{F+4}:{F+7}], v{vX1+ks} offset:{xs}"); a.lg_issue(s)
        a(f"ds_read_b64_tr_b16 v[{F+12}:{F+13}], v{wb} offset:{wo+8192}"); a.lg_issue(s)
        a(f"ds_read_b64_tr_b16 v[{F+14}:{F+15}], v{wb} offset:{wo+8192+1024}"); a.lg_issue(s)
        a(f"ds_read_b128 v[{F+16}:{F+19}], v{vB+ks} offset:{bs}"); a.lg_issue(s)
    def mf(d,A,B,s):
        c = "0" if s==0 else f"v[{d}:{d+15}]"
        a(f"v_mfma_f32_32x32x16_bf16 v[{d}:{d+15}], v[{A}:{A+3}], v[{B}:{B+3}], {c}")
    a.vm_wait([("x",0),("w",0)])
    a("s_barrier")
    stamp(a,2)
    if STAMP: a("s_waitcnt lgkmcnt(0)")
    reads(0)
    for s in range(28):
        F=FR[s&1]; i=s//2
        a.lg_wait(s)
        if s==27:
            mf(aS,F,F+16,s)
        mf(aG[0],F+8,F,s); mf(aG[1],F+8,F+4,s)
        if s%2==1 and i<13:
            need=[("w",i+1)]
            if (i+1)%2==0: need.append(("x",(i+1)//2))
            a.vm_wait(need)
            a("s_barrier")
        if s<27: reads(s+1)
        mf(aU[0],F+12,F,s)
        if s%2==1 and i<13:
            if i>=1 and i+4<=13: dma_w(i+4)
        mf(aU[1],F+12,F+4,s)
        if s%2==1 and i<13:
            if i%2==0 and i>=2 and i//2+2<=6: dma_xb(i//2+2)
        if s<27: mf(aS,F,F+16,s)
    stamp(a,3)
    re=[aS+j for j in range(8)]; im=[aS+8+j for j in range(8)]
    for j in range(8): a(f"v_permlane16_swap_b32 v{re[j]}, v{im[j]}")
    BU=32
    bur=[BU+j for j in range(8)]; bui=[BU+8+j for j in range(8)]
    for j in range(8):
        a(f"v_mul_f32 v{bur[j]}, v{cr}, v{re[j]}")
        a(f"v_mul_f32 v{bui[j]}, v{cr}, v{im[j]}")
        a(f"v_fma_f32 v{bur[j]}, -v{ci}, v{im[j]}, v{bur[j]}")
        a(f"v_fmac_f32 v{bui[j]}, v{ci}, v{re[j]}")
    hA=(48,49); hB=(50,51)
    cur=(bur[0],bui[0])
    for j in range(1,8):
        n = hA if j%2 else hB
        a(f"v_fma_f32 v{n[0]}, v{lr}, v{cur[0]}, v{bur[j]}")
        a(f"v_fma_f32 v{n[1]}, v{lr}, v{cur[1]}, v{bui[j]}")
        a(f"v_fma_f32 v{n[0]}, -v{li}, v{cur[1]}, v{n[0]}")
        a(f"v_fmac_f32 v{n[1]}, v{li}, v{cur[0]}")
        cur=n
    assert cur==hA
    a(f"v_and_b32 v{t0}, 15, v{LANE}")
    a("s_lshl_b32 s3, s69, 7"); a(f"s_add_u32 s3, s3, {SCR}")
    a(f"v_lshlrev_b32 v{t0}, 3, v{t0}")
    a(f"v_add_u32 v{t0}, s3, v{t0}")
    a(f"v_lshl_add_u32 v{t1}, v{vseg}, 8, v{t0}")
    a(f"ds_write_b64 v{t1}, v[{hA[0]}:{hA[1]}]")
    a("s_waitcnt lgkmcnt(0)")
    a("s_barrier")
    E=152
    for sp in range(16):
        a(f"ds_read_b64 v[{E+2*sp}:{E+2*sp+1}], v{t0} offset:{sp*256}"); a.lg_issue(("e",sp))
    c0r,c0i=52,53
    a(f"v_mov_b32 v{c0r}, 0"); a(f"v_mov_b32 v{c0i}, 0")
    a.lg_wait(("e",0))
    cur=(E,E+1)
    for sp in range(1,16):
        a(f"v_cmp_eq_u32 vcc, {sp}, v{vseg}")
        a.lg_wait(("e",sp))
        n=(E+2*sp,E+2*sp+1)
        a(f"v_fmac_f32 v{n[0]}, v{l8r}, v{cur[0]}")
        a(f"v_fmac_f32 v{n[1]}, v{l8r}, v{cur[1]}")
        a(f"v_cndmask_b32 v{c0r}, v{c0r}, v{cur[0]}, vcc")
        a(f"v_cndmask_b32 v{c0i}, v{c0i}, v{cur[1]}, vcc")
        a(f"v_fma_f32 v{n[0]}, -v{l8i}, v{cur[1]}, v{n[0]}")
        a(f"v_fmac_f32 v{n[1]}, v{l8i}, v{cur[0]}")
        cur=n
    a("s_mul_i32 s78, s65, 16"); a("s_lshl_b32 s78, s78, 9"); a(f"s_add_u32 s78, s78, {T_OFF}")
    a(f"v_and_b32 v54, 15, v{LANE}")
    a("s_lshl_b32 s3, s69, 4")
    a("v_add_u32 v54, s3, v54")
    a("v_lshlrev_b32 v54, 4, v54")
    a("s_and_b32 s3, s66, 3"); a("s_cmp_lg_u32 s3, 0"); a("s_cbranch_scc1 K1_NOPUB")
    a(f"v_mov_b32 v56, v{cur[0]}"); a("v_mov_b32 v57, 1"); a(f"v_mov_b32 v58, v{cur[1]}"); a("v_mov_b32 v59, 1")
    a("s_lshl_b32 s3, s64, 9"); a("s_add_u32 s3, s3, s78")
    a("s_mov_b64 exec, 0xffff")
    a("buffer_store_dwordx4 v[56:59], v54, s[60:63], s3 offen sc0 sc1")
    a("s_mov_b64 exec, -1")
    a.label("K1_NOPUB")
    stamp(a,4)
    a(f"v_lshlrev_b32 v55, 4, v{LANE}")
    for t in range(2):
        P=152+16*t
        for i in range(16):
            g=aG[t]+i; u=aU[t]+i; x=60+(i%4)*2; y=x+1
            if not NOROUND:
                a(f"v_cvt_pk_bf16_f32 v{g}, 0, v{g}")
                a(f"v_cvt_pk_bf16_f32 v{u}, 0, v{u}")
            a(f"v_mul_f32 v{x}, {NLOG2E}, v{g}")
            a(f"v_exp_f32 v{x}, v{x}")
            a(f"v_add_f32 v{x}, 1.0, v{x}")
            a(f"v_rcp_f32 v{x}, v{x}")
            a(f"v_mul_f32 v{g}, v{g}, v{x}")
            if not NOROUND: a(f"v_cvt_pk_bf16_f32 v{g}, 0, v{g}")
            a(f"v_mul_f32 v{g}, v{g}, v{u}")
            if i%2==1: a(f"v_cvt_pk_bf16_f32 v{P+i//2}, v{g-1}, v{g}")
        tile = "s71" if t==0 else "s72"
        a(f"s_lshl_b32 s3, s64, 2"); a(f"s_add_u32 s3, s3, {tile}"); a("s_mul_i32 s3, s3, 112")
        a("s_lshl_b32 s4, s65, 2"); a("s_add_u32 s4, s4, s68"); a("s_lshl_b32 s4, s4, 1")
        a("s_add_u32 s3, s3, s4"); a("s_lshl_b32 s3, s3, 10"); a(f"s_add_u32 s3, s3, {A_OFF}")
        a(f"buffer_store_dwordx4 v[{P}:{P+3}], v55, s[60:63], s3 offen")
        a(f"buffer_store_dwordx4 v[{P+4}:{P+7}], v55, s[60:63], s3 offen offset:1024")
    stamp(a,5)
    Gr,Gi=60,61; G2=(62,63)
    TB=72
    a(f"v_mov_b32 v{Gr}, 0"); a(f"v_mov_b32 v{Gi}, 0")
    a("s_mov_b32 s79, 0")
    a("s_cmp_eq_u32 s64, 0"); a("s_cbranch_scc1 K1_GDONE")
    a.label("K1_POLL")
    for j in range(15):
        if j%8==0: a(f"s_add_u32 s3, s78, {j*512}")
        a(f"buffer_load_dwordx4 v[{TB+4*j}:{TB+4*j+3}], v54, s[60:63], s3 offen offset:{(j%8)*512} sc0 sc1")
    a(f"v_mov_b32 v{Gr}, 0"); a(f"v_mov_b32 v{Gi}, 0")
    a("s_mov_b64 s[4:5], -1")
    a("s_waitcnt vmcnt(0)")
    for j in range(15):
        b=TB+4*j
        if j>0:
            a(f"s_cmp_le_u32 s64, {j}"); a("s_cbranch_scc1 K1_LEND")
        a(f"v_and_b32 v{b+1}, v{b+1}, v{b+3}")
        a(f"v_fma_f32 v{G2[0]}, v{lcr}, v{Gr}, v{b}")
        a(f"v_fma_f32 v{G2[1]}, v{lcr}, v{Gi}, v{b+2}")
        a(f"v_cmp_eq_u32 vcc, 1, v{b+1}")
        a(f"v_fma_f32 v{G2[0]}, -v{lci}, v{Gi}, v{G2[0]}")
        a(f"v_fma_f32 v{Gi}, v{lci}, v{Gr}, v{G2[1]}")
        a(f"v_mov_b32 v{Gr}, v{G2[0]}")
        a("s_and_b64 s[4:5], s[4:5], vcc")
    a.label("K1_LEND")
    a("s_cmp_eq_u64 s[4:5], -1")
    a("s_cbranch_scc1 K1_GDONE")
    a("s_sleep 1")
    a("s_add_u32 s79, s79, 1")
    a("s_cmp_lt_u32 s79, 0x40000")
    a("s_cbranch_scc1 K1_POLL")
    a.label("K1_GDONE")
    a.nop(4)
    stamp(a,6)
    a(f"v_fmac_f32 v{c0r}, v{pwr}, v{Gr}")
    a(f"v_fmac_f32 v{c0i}, v{pwr}, v{Gi}")
    a(f"v_fma_f32 v{c0r}, -v{pwi}, v{Gi}, v{c0r}")
    a(f"v_fmac_f32 v{c0i}, v{pwi}, v{Gr}")
    cur=(c0r,c0i)
    for j in range(8):
        n=(bur[j],bui[j])
        a(f"v_fmac_f32 v{n[0]}, v{lr}, v{cur[0]}")
        a(f"v_fmac_f32 v{n[1]}, v{lr}, v{cur[1]}")
        a(f"v_fma_f32 v{n[0]}, -v{li}, v{cur[1]}, v{n[0]}")
        a(f"v_fmac_f32 v{n[1]}, v{li}, v{cur[0]}")
        cur=n
    PK=64
    for j in range(4):
        a(f"v_cvt_pk_bf16_f32 v{PK+j}, v{bur[2*j]}, v{bur[2*j+1]}")
        a(f"v_cvt_pk_bf16_f32 v{PK+4+j}, -v{bui[2*j]}, -v{bui[2*j+1]}")
    a(f"v_and_b32 v{t0}, 15, v{LANE}")
    a(f"v_mul_u32_u24 v{t0}, 72, v{t0}")
    a(f"v_bfe_u32 v{t1}, v{LANE}, 4, 1")
    a(f"v_lshl_add_u32 v{t0}, v{t1}, 5, v{t0}")
    a(f"v_lshrrev_b32 v{t1}, 5, v{LANE}")
    a(f"v_lshl_add_u32 v{t0}, v{t1}, 3, v{t0}")
    a("s_lshl_b32 s3, s66, 12")
    a(f"v_add_u32 v{t0}, s3, v{t0}")
    a(f"ds_write_b64 v{t0}, v[{PK}:{PK+1}]")
    a(f"ds_write_b64 v{t0}, v[{PK+2}:{PK+3}] offset:16")
    a(f"ds_write_b64 v{t0}, v[{PK+4}:{PK+5}] offset:{16*72}")
    a(f"ds_write_b64 v{t0}, v[{PK+6}:{PK+7}] offset:{16*72+16}")
    a(f"v_bfe_u32 v{t0}, v{LANE}, 2, 2")
    a(f"v_lshl_add_u32 v{t0}, v{t1}, 3, v{t0}")
    a(f"v_mul_u32_u24 v{t0}, 72, v{t0}")
    a(f"v_bfe_u32 v{t1}, v{LANE}, 4, 1")
    a(f"v_lshl_add_u32 v{t0}, v{t1}, 5, v{t0}")
    a(f"v_and_b32 v{t1}, 3, v{LANE}")
    a(f"v_lshl_add_u32 v{t0}, v{t1}, 3, v{t0}")
    a(f"v_add_u32 v{t0}, s3, v{t0}")
    a("s_waitcnt lgkmcnt(0)")
    for sidx in range(2):
        for t in range(2):
            a(f"ds_read_b64_tr_b16 v[{72+4*sidx+2*t}:{72+4*sidx+2*t+1}], v{t0} offset:{(16*sidx+4*t)*72}")
    a("s_lshl_b32 s3, s64, 2"); a("s_add_u32 s3, s3, s71"); a("s_mul_i32 s3, s3, 56")
    a("s_lshl_b32 s4, s65, 1"); a("s_add_u32 s4, s4, s69"); a("s_add_u32 s3, s3, s4")
    a("s_lshl_b32 s3, s3, 10"); a(f"s_add_u32 s3, s3, {H_OFF}"); a(f"s_add_u32 s4, s3, {28*1024}")
    a("s_waitcnt lgkmcnt(0)")
    a("buffer_store_dwordx4 v[72:75], v55, s[60:63], s3 offen")
    a("buffer_store_dwordx4 v[76:79], v55, s[60:63], s4 offen")
    stamp(a,7)
    if STAMP: a("s_waitcnt vmcnt(0)")
    stamp(a,8); stamp_rt(a,9)
    if STAMP: a("v_mov_b32 v4, s79"); a("s_nop 0"); a("v_readfirstlane_b32 s100, v4")
    stamp_flush(a,11,0,60,66)
    a.label("K1_END"); a("s_endpgm")
    return a, a.maxv+1

def gen_k2():
    a=Asm(); head(a,"k2_kernel")
    import os; a.strict=bool(os.environ.get("K2STRICT"))
    a("s_cmp_ge_u32 s2, 224"); a("s_cbranch_scc1 K2_END")
    stamp_rt(a,0); stamp(a,1)
    a("s_load_dwordx16 s[16:31], s[0:1], 0")
    a("s_load_dwordx16 s[32:47], s[0:1], 64")
    a("s_and_b32 s3, s2, 7"); a("s_lshr_b32 s4, s2, 3")
    a("s_lshl_b32 s5, s3, 2"); a("s_and_b32 s6, s4, 3"); a("s_add_u32 s64, s5, s6")
    a("s_lshr_b32 s65, s4, 2")
    a("v_lshrrev_b32 v2, 6, v0")
    a("v_and_b32 v1, 63, v0")
    a("v_readfirstlane_b32 s66, v2")
    LANE=1
    t0,t1,t2,t3=2,3,4,5
    oF=6; oD=7; oD2=8; rA=[9,10,11,12]
    EX=14
    AF=[32,40]
    ACC=[48,64,80,96]
    BF=112
    D=12
    a("s_waitcnt lgkmcnt(0)")
    srd(a,48,40,41,1792*896)
    srd(a,60,46,47,WS_SIZE)
    srd(a,52,16,17,2048*896)
    srd(a,68,42,43,2048*448*4)
    a("s_cmp_eq_u32 s66, 4")
    a("s_cselect_b32 s56, s26, s28"); a("s_cselect_b32 s57, s27, s29")
    a("s_and_b32 s57, s57, 0xffff"); a(f"s_mov_b32 s58, {448*896}"); a("s_mov_b32 s59, 0x20000")
    a(f"v_lshlrev_b32 v{oF}, 4, v{LANE}")
    a("s_mul_i32 s67, s66, 24576")
    a("s_cmp_ge_u32 s66, 4"); a("s_cbranch_scc1 K2_SSM")
    a(f"v_and_b32 v{t0}, 15, v{LANE}")
    a("s_lshl_b32 s3, s65, 6")
    a(f"v_lshl_add_u32 v{t0}, v{t0}, 2, s3")
    a(f"v_lshlrev_b32 v{t1}, 1, v{t0}")
    a(f"global_load_dwordx2 v[30:31], v{t1}, s[32:33]")
    for g in range(4):
        a(f"v_lshrrev_b32 v{t2}, 4, v{LANE}")
        a(f"v_lshlrev_b32 v{t2}, 4, v{t2}")
        a(f"s_lshl_b32 s3, s66, 2"); a(f"s_add_u32 s3, s3, {g}")
        a(f"v_add_u32 v{t2}, s3, v{t2}")
        a(f"v_and_b32 v{t3}, 31, v{t2}")
        tau(a,208,t3,209)
        a(f"v_and_b32 v209, 32, v{t2}")
        a("v_or_b32 v208, v208, v209")
        a("s_lshl_b32 s3, s64, 6")
        a("v_add_u32 v208, s3, v208")
        a("s_movk_i32 s4, 896")
        a("v_mul_lo_u32 v209, v208, s4")
        a(f"v_add_u32 v209, v209, v{t1}")
        a(f"buffer_load_dwordx2 v[{EX+4*g}:{EX+4*g+1}], v209, s[52:55], 0 offen")
        a(f"v_lshlrev_b32 v{212+g}, 1, v209")
        a("s_lshr_b32 s3, s64, 1"); a("s_mul_i32 s3, s3, 7"); a("s_add_u32 s3, s3, s65"); a("s_lshl_b32 s3, s3, 7")
        a("s_and_b32 s4, s64, 1"); a("s_lshl_b32 s4, s4, 6"); a("s_add_u32 s3, s3, s4")
        a(f"v_add_u32 v209, s3, v{t2}")
        a(f"v_bfe_u32 v210, v{t2}, 1, 3")
        a(f"v_bfe_u32 v211, v{t0}, 3, 3")
        a("v_xor_b32 v210, v210, v211")
        a("v_lshlrev_b32 v210, 4, v210")
        a("v_lshl_add_u32 v209, v209, 7, v210")
        a(f"v_and_b32 v210, 4, v{t0}")
        a("v_lshl_add_u32 v209, v210, 1, v209")
        a(f"buffer_load_dwordx2 v[{EX+4*g+2}:{EX+4*g+3}], v209, s[60:63], 0 offen")
    NPRE=9
    def mainloop(role):
        a.vm=["pre"]*NPRE if role=="F" else []
        a.lg=[]
        if role=="F":
            a(f"v_lshrrev_b32 v{t0}, 3, v{LANE}")
            a(f"v_bfe_u32 v{t1}, v{LANE}, 4, 1")
            a(f"v_lshlrev_b32 v{t1}, 2, v{t1}")
            a(f"v_and_b32 v{t2}, 7, v{LANE}")
            a(f"v_xor_b32 v{t1}, v{t1}, v{t2}")
            a("s_movk_i32 s4, 896")
            a(f"v_mul_lo_u32 v{t0}, v{t0}, s4")
            a(f"v_lshl_add_u32 v{oD}, v{t1}, 4, v{t0}")
            a("s_lshl_b32 s3, s65, 7")
            a(f"v_add_u32 v{oD}, s3, v{oD}")
            a(f"s_mul_i32 s72, s66, {448*896}")
            a(f"v_bfe_u32 v{t0}, v{LANE}, 2, 2")
            a(f"v_lshrrev_b32 v{t1}, 5, v{LANE}")
            a(f"v_lshl_add_u32 v{t1}, v{t1}, 2, v{t0}")
            a(f"v_lshlrev_b32 v{t1}, 7, v{t1}")
            a(f"v_bfe_u32 v{t0}, v{LANE}, 3, 1")
            a(f"v_lshl_add_u32 v{t1}, v{t0}, 6, v{t1}")
            a(f"v_bfe_u32 v{t0}, v{LANE}, 4, 1")
            a(f"v_lshl_add_u32 v{t1}, v{t0}, 5, v{t1}")
            a(f"v_and_b32 v{t0}, 3, v{LANE}")
            a(f"v_lshl_add_u32 v{t1}, v{t0}, 3, v{t1}")
            a(f"v_add_u32 v{rA[0]}, s67, v{t1}")
            a(f"v_xor_b32 v{t1}, 64, v{t1}")
            a(f"v_add_u32 v{rA[1]}, s67, v{t1}")
            a("s_lshl_b32 s3, s64, 1"); a("s_mul_i32 s3, s3, 112"); a("s_mul_i32 s4, s66, 28"); a("s_add_u32 s3, s3, s4")
            a("s_lshl_b32 s3, s3, 10"); a(f"s_add_u32 s73, s3, {A_OFF}"); a(f"s_add_u32 s74, s73, {112*1024}")
        else:
            a(f"v_lshrrev_b32 v{t0}, 3, v{LANE}")
            a("s_lshl_b32 s3, s65, 6")
            a(f"v_add_u32 v{t0}, s3, v{t0}")
            a("s_movk_i32 s4, 896")
            a(f"v_mul_lo_u32 v{t0}, v{t0}, s4")
            a(f"v_lshrrev_b32 v{t1}, 4, v{LANE}")
            a(f"v_and_b32 v{t2}, 7, v{LANE}")
            a(f"v_xor_b32 v{t1}, v{t1}, v{t2}")
            a(f"v_lshl_add_u32 v{oD}, v{t1}, 4, v{t0}")
            a(f"v_xor_b32 v{t1}, 4, v{t1}")
            a(f"v_lshl_add_u32 v{oD2}, v{t1}, 4, v{t0}")
            a(f"v_and_b32 v{t0}, 31, v{LANE}")
            a(f"v_lshrrev_b32 v{t1}, 5, v{LANE}")
            a(f"v_bfe_u32 v{t2}, v{t0}, 1, 3")
            a(f"v_xor_b32 v{t2}, v{t2}, v{t1}")
            a(f"v_lshlrev_b32 v{t2}, 4, v{t2}")
            a(f"v_lshl_add_u32 v{t2}, v{t0}, 7, v{t2}")
            for ks in range(4):
                a(f"v_xor_b32 v{t3}, {ks*32}, v{t2}")
                a(f"v_add_u32 v{rA[ks]}, s67, v{t3}")
            a("s_lshl_b32 s3, s64, 1"); a("s_mul_i32 s3, s3, 56"); a("s_sub_u32 s4, s66, 4"); a("s_mul_i32 s4, s4, 28"); a("s_add_u32 s3, s3, s4")
            a("s_lshl_b32 s3, s3, 10"); a(f"s_add_u32 s73, s3, {H_OFF}"); a(f"s_add_u32 s74, s73, {56*1024}")
        def ld_frag(s):
            b=BF+(s%D)*8
            if s%4==0:
                a(f"s_add_u32 s75, s73, {s*1024}"); a(f"s_add_u32 s76, s74, {s*1024}")
            a(f"buffer_load_dwordx4 v[{b}:{b+3}], v{oF}, s[60:63], s75 offen offset:{(s%4)*1024}"); a.vm_issue(("b",s))
            a(f"buffer_load_dwordx4 v[{b+4}:{b+7}], v{oF}, s[60:63], s76 offen offset:{(s%4)*1024}"); a.vm_issue(("b",s))
        def dmaF(s):
            a(f"s_add_u32 m0, s67, {(s%D)*2048}")
            a(f"s_add_u32 s77, s72, {s*16*896}"); a(f"s_add_u32 s78, s72, {s*16*896+6144}")
            a(f"buffer_load_dwordx4 v{oD}, s[48:51], s77 offen lds"); a.vm_issue(("w",s))
            a(f"buffer_load_dwordx4 v{oD}, s[48:51], s78 offen offset:1024 lds"); a.vm_issue(("w",s))
        def dmaS(cs,pair):
            for e in (2*pair,2*pair+1):
                a(f"s_add_u32 m0, s67, {(cs%3)*8192+(e//4)*4096}")
                a(f"s_mov_b32 s77, {cs*128+e*7168-(e%4)*1024}")
                o = oD if e%2==0 else oD2
                a(f"buffer_load_dwordx4 v{o}, s[56:59], s77 offen offset:{(e%4)*1024} lds"); a.vm_issue(("w",cs*4))
        def reads(s):
            F=AF[s&1]
            if role=="F":
                o=(s%D)*2048
                for dt in range(2):
                    a(f"ds_read_b64_tr_b16 v[{F+4*dt}:{F+4*dt+1}], v{rA[dt]} offset:{o}"); a.lg_issue(s)
                    a(f"ds_read_b64_tr_b16 v[{F+4*dt+2}:{F+4*dt+3}], v{rA[dt]} offset:{o+1024}"); a.lg_issue(s)
            else:
                o=((s//4)%3)*8192
                for dt in range(2):
                    a(f"ds_read_b128 v[{F+4*dt}:{F+4*dt+3}], v{rA[s%4]} offset:{o+dt*4096}"); a.lg_issue(s)
        if role=="F":
            for s in range(D): dmaF(s); ld_frag(s)
        else:
            for s in range(D):
                dmaS(s//4, s%4); ld_frag(s)
        wtag = (lambda s: ("w",s)) if role=="F" else (lambda s: ("w",(s//4)*4))
        if role=="F":
            a.vm_wait("pre")
            a("v_lshlrev_b32 v208, 16, v30"); a("v_and_b32 v209, 0xffff0000, v30"); a("v_lshlrev_b32 v210, 16, v31"); a("v_and_b32 v211, 0xffff0000, v31")
            for g in range(4):
                xr=EX+4*g; nr=xr+2; T=216+8*g
                a(f"v_lshlrev_b32 v{T}, 16, v{xr}"); a(f"v_and_b32 v{T+1}, 0xffff0000, v{xr}")
                a(f"v_lshlrev_b32 v{T+2}, 16, v{xr+1}"); a(f"v_and_b32 v{T+3}, 0xffff0000, v{xr+1}")
                a(f"v_lshlrev_b32 v{T+4}, 16, v{nr}"); a(f"v_and_b32 v{T+5}, 0xffff0000, v{nr}")
                a(f"v_lshlrev_b32 v{T+6}, 16, v{nr+1}"); a(f"v_and_b32 v{T+7}, 0xffff0000, v{nr+1}")
                for k in range(4):
                    a(f"v_mul_f32 v{T+4+k}, v{T+4+k}, v{208+k}")
                    a(f"v_cvt_pk_bf16_f32 v{T+4+k}, 0, v{T+4+k}")
        a.vm_wait(wtag(0))
        stamp(a,2)
        if STAMP: a("s_waitcnt lgkmcnt(0)")
        reads(0)
        for s in range(28):
            F=AF[s&1]; b=BF+(s%D)*8
            if s<27:
                a.vm_wait(wtag(s+1)); reads(s+1)
            a.vm_wait(("b",s))
            a.lg_wait(s)
            for dt in range(2):
                for tt in range(2):
                    d=ACC[dt*2+tt]; c="0" if s==0 else f"v[{d}:{d+15}]"
                    a(f"v_mfma_f32_32x32x16_bf16 v[{d}:{d+15}], v[{F+4*dt}:{F+4*dt+3}], v[{b+4*tt}:{b+4*tt+3}], {c}")
            if role=="F":
                if s+D<28: dmaF(s+D); ld_frag(s+D)
            else:
                if s>=3:
                    cs=(s-3)//4; pair=(s-3)%4
                    if cs+3<7: dmaS(cs+3,pair)
                if s+D<28: ld_frag(s+D)
        stamp(a,3)
        a(f"v_and_b32 v{t0}, 31, v{LANE}")
        a(f"v_mul_u32_u24 v{t0}, 272, v{t0}")
        a(f"v_lshrrev_b32 v{t1}, 5, v{LANE}")
        a(f"v_lshl_add_u32 v{t0}, v{t1}, 4, v{t0}")
        a(f"v_add_u32 v{t0}, s67, v{t0}")
        for dt in range(2):
            for tt in range(2):
                d=ACC[dt*2+tt]
                for q in range(4):
                    a(f"ds_write_b128 v{t0}, v[{d+4*q}:{d+4*q+3}] offset:{tt*32*272+dt*128+q*32}")
        a("s_waitcnt lgkmcnt(0)")
        stamp(a,4)
        a("s_barrier")
        stamp(a,5)
        if role=="S":
            stamp(a,6); stamp_rt(a,7)
            stamp_flush(a,8,1<<19,60,66)
        if STAMP: a("s_waitcnt lgkmcnt(0)")
    mainloop("F")
    a(f"v_lshrrev_b32 v{t0}, 4, v{LANE}")
    a(f"v_lshlrev_b32 v{t0}, 4, v{t0}")
    a("s_lshl_b32 s3, s66, 2")
    a(f"v_add_u32 v{t0}, s3, v{t0}")
    a(f"v_mul_u32_u24 v{t0}, 272, v{t0}")
    a(f"v_and_b32 v{t1}, 15, v{LANE}")
    a(f"v_lshl_add_u32 v{t0}, v{t1}, 4, v{t0}")
    a(f"v_add_u32 v{t1}, {3*24576}, v{t0}")
    PB=48
    for g in range(4):
        for p in range(6):
            r=PB+(g*6+p)*4
            base = t0 if p<3 else t1
            a(f"ds_read_b128 v[{r}:{r+3}], v{base} offset:{(p%3)*24576+g*272}"); a.lg_issue(("p",g))
    for g in range(4):
        a.lg_wait(("p",g))
        r=PB+g*24; T=216+8*g
        for k in range(4):
            f=r+k
            a(f"v_add_f32 v{f}, v{f}, v{f+4}")
            a(f"v_add_f32 v{f+8}, v{f+8}, v{f+12}")
            a(f"v_add_f32 v{f+16}, v{f+16}, v{f+20}")
            a(f"v_add_f32 v{f}, v{f}, v{f+8}")
            a(f"v_add_f32 v{f+16}, v{f+16}, v{T+4+k}")
            a(f"v_cvt_pk_bf16_f32 v{f}, 0, v{f}")
            a(f"v_mul_f32 v{f+4}, {NLOG2E}, v{f}")
            a(f"v_exp_f32 v{f+4}, v{f+4}")
            a(f"v_add_f32 v{f+4}, 1.0, v{f+4}")
            a(f"v_rcp_f32 v{f+4}, v{f+4}")
            a(f"v_mul_f32 v{f}, v{f}, v{f+4}")
            a(f"v_cvt_pk_bf16_f32 v{f}, 0, v{f}")
            a(f"v_fma_f32 v{f+8}, v{f}, v{f+16}, v{T+k}")
        if PERT and g==0:
            a(f"v_cmp_eq_u32 vcc, 0, v212"); a(f"v_mov_b32 v2, 0"); a(f"v_mov_b32 v3, {PERT}"); a("s_nop 1")
            a(f"v_cndmask_b32 v2, v2, v3, vcc"); a(f"v_add_f32 v{r+8}, v{r+8}, v2")
        a(f"buffer_store_dwordx4 v[{r+8}:{r+11}], v{212+g}, s[68:71], 0 offen")
    if STAMP: a("s_waitcnt vmcnt(0)")
    stamp(a,6); stamp_rt(a,7)
    stamp_flush(a,8,1<<19,60,66)
    a("s_endpgm")
    a.label("K2_SSM")
    mainloop("S")
    a.label("K2_END"); a("s_endpgm")
    return a, a.maxv+1

def main(out):
    k0,v0=gen_k0(); k1,v1=gen_k1(); k2,v2=gen_k2()
    hdr=open("cdna_kernels/"+NAME+".s.ref").read().split("; Override launch")[0]
    s=hdr
    s+="; @launch kernel=k0_kernel grid=(256,1,1) block=(256,1,1) lds=0\n"
    s+="; @launch kernel=k1_kernel grid=(224,1,1) block=(512,1,1) lds=163840\n"
    s+="; @launch kernel=k2_kernel grid=(224,1,1) block=(384,1,1) lds=147456\n"
    s+='.amdgcn_target "amdgcn-amd-amdhsa--gfx950"\n.text\n'
    s+=k0.text()+k1.text()+k2.text()
    s+='.section .rodata,"a"\n'
    s+=kd("k0_kernel",v0)+kd("k1_kernel",v1)+kd("k2_kernel",v2)
    open(out,"w").write(s)
    print("vgprs",v0,v1,v2, "bytes",len(s))
if __name__=="__main__":
    main(sys.argv[1] if len(sys.argv)>1 else "cdna_kernels/"+NAME+".s")
```

```python
import sys, os, struct
from asmlib import *

NAME="recurrent_scan__ssm_conv_s5__swiglu_ffn__prompt"
KN=NAME+"_kernel"
A_OFF=2<<20
H_OFF=10<<20
T_OFF=14<<20
FL_OFF=T_OFF+114688
CLR_BYTES=114688+4096
STM_OFF=(14<<20)+(256<<10)
STR_OFF=STM_OFF+8192
STD_OFF=STM_OFF+16384
CS_OFF=STM_OFF+32768
WS_SIZE=16<<20
LOG2E=0x3fb8aa3b; NLOG2E=0xbfb8aa3b; INV2PI=0x3e22f983; INV448=0x3b124925
STAMP=bool(os.environ.get("STAMP"))
ST_OFF=15<<20
NEARLY=int(os.environ.get("NEARLY","8"))
DFR=int(os.environ.get("DFR","8"))
ROT2=int(os.environ.get("ROT2","1"))
TOUCH=int(os.environ.get("TOUCH","1"))

def srd(a, d, lo, hi, size):
    a(f"s_mov_b32 s{d}, s{lo}"); a(f"s_and_b32 s{d+1}, s{hi}, 0xffff"); a(f"s_mov_b32 s{d+2}, {size}"); a(f"s_mov_b32 s{d+3}, 0x20000")
nst=[0]
def stamp(a,i):
    if STAMP:
        a(f"s_memtime s[100:101]"); a("s_waitcnt lgkmcnt(0)"); a.lg=[]
        a(f"v_writelane_b32 v255, s100, {i}")
def stamp_rt(a,i):
    if STAMP:
        a(f"s_memrealtime s[100:101]"); a("s_waitcnt lgkmcnt(0)"); a.lg=[]
        a(f"v_writelane_b32 v255, s100, {i}")
def stamp_flush(a):
    if not STAMP: return
    a(f"s_lshl_b32 s3, s2, 3"); a(f"s_add_u32 s3, s3, s66"); a("s_lshl_b32 s3, s3, 8"); a(f"s_add_u32 s3, s3, {ST_OFF}")
    a("v_lshlrev_b32 v254, 2, v1")
    a(f"buffer_store_dword v255, v254, s[60:63], s3 offen")
def tau_inv(a, dst, t, tmp):
    a(f"v_and_b32 v{dst}, 3, v{t}"); a(f"v_bfe_u32 v{tmp}, v{t}, 2, 2"); a(f"v_lshl_or_b32 v{dst}, v{tmp}, 3, v{dst}")
    a(f"v_bfe_u32 v{tmp}, v{t}, 4, 1"); a(f"v_lshl_or_b32 v{dst}, v{tmp}, 2, v{dst}")
def tau(a, dst, r, tmp):
    a(f"v_and_b32 v{dst}, 3, v{r}"); a(f"v_bfe_u32 v{tmp}, v{r}, 3, 2"); a(f"v_lshl_or_b32 v{dst}, v{tmp}, 2, v{dst}")
    a(f"v_bfe_u32 v{tmp}, v{r}, 2, 1"); a(f"v_lshl_or_b32 v{dst}, v{tmp}, 4, v{dst}")
def allreduce32_multi(a, vs, ts):
    for pat in ("quad_perm:[1,0,3,2]","quad_perm:[2,3,0,1]","row_half_mirror","row_mirror"):
        for v in vs: a(f"v_add_f32_dpp v{v}, v{v}, v{v} {pat} row_mask:0xf bank_mask:0xf")
    for v,t in zip(vs,ts): a(f"v_mov_b32 v{t}, v{v}")
    for v,t in zip(vs,ts): a(f"v_permlane16_swap_b32 v{v}, v{t}")
    for v,t in zip(vs,ts): a(f"v_add_f32 v{v}, v{v}, v{t}")

XS=0; BS=49152; WSL=73728
FIFO=[0,22528,45056,67584,90112,114688]
ESCR=155648; GSCR=ESCR+4096
TRS=139264
ESCR=157696; GSCR=ESCR+4096

def gen():
    a=Asm()
    a.raw(f".globl {KN}\n.p2align 8\n.type {KN},@function\n{KN}:")
    a("s_cmp_ge_u32 s2, 256"); a("s_cbranch_scc1 L_END")
    a("s_load_dwordx16 s[16:31], s[0:1], 0")
    a("s_load_dwordx16 s[32:47], s[0:1], 64")
    if STAMP: a("v_mov_b32 v255, 0")
    stamp_rt(a,0); stamp(a,1)
    a("v_lshrrev_b32 v2, 6, v0")
    a("v_and_b32 v1, 63, v0")
    a("v_readfirstlane_b32 s66, v2")
    LANE=1
    a("s_cmp_ge_u32 s2, 224"); a("s_cbranch_scc1 L_SPARE")
    a("s_and_b32 s3, s2, 7"); a("s_lshr_b32 s4, s2, 3")
    a("s_lshr_b32 s5, s3, 1"); a("s_lshl_b32 s5, s5, 2"); a("s_and_b32 s6, s4, 3"); a("s_add_u32 s64, s5, s6")
    a("s_and_b32 s5, s3, 1"); a("s_mul_i32 s5, s5, 7"); a("s_lshr_b32 s7, s4, 2"); a("s_add_u32 s65, s5, s7")
    a("s_lshl_b32 s5, s6, 1"); a("s_add_u32 s5, s5, s7"); a("s_sub_u32 s6, s5, 7"); a("s_cmp_ge_u32 s5, 7"); a("s_cselect_b32 s5, s6, s5")
    if not ROT2: a("s_mov_b32 s5, 0")
    for J in range(7):
        a(f"s_add_u32 s6, s5, {J}"); a("s_sub_u32 s7, s6, 7"); a("s_cmp_ge_u32 s6, 7"); a(f"s_cselect_b32 s{80+J}, s7, s6")
    a("s_and_b32 s67, s66, 1")
    a("s_lshr_b32 s68, s66, 1")
    a("s_lshr_b32 s69, s68, 1")
    a("s_and_b32 s70, s68, 1")
    a("s_lshl_b32 s71, s67, 1"); a("s_add_u32 s71, s71, s70")
    a("s_xor_b32 s72, s71, 1")
    vX0=2; vX1=6; vB=10; vW=14; vW2=15; oX=16; oB=18; oW=19
    vseg=20; lr,li,cr,ci,l8r,l8i,pwr,pwi,s8r,s8i,scr,sci=range(21,33)
    t0,t1,t2=33,34,35; t3=226; t4=227
    FR=[36,56]
    aG=[76,92]; aU=[108,124]; aS=140
    CSG=156; CSU=172; SM=188; SR=204; FM=220; CSB=224
    a(f"v_lshrrev_b32 v{t0}, 3, v{LANE}")
    a("s_lshl_b32 s3, s66, 4")
    a("s_movk_i32 s4, 896")
    for e in range(2):
        a(f"v_add_u32 v{t1}, s3, v{t0}")
        if e: a(f"v_add_u32 v{t1}, 8, v{t1}")
        a(f"v_and_b32 v{t2}, 31, v{t1}")
        tau(a,t3,t2,t4)
        a(f"v_and_b32 v{t2}, 0x60, v{t1}")
        a(f"v_or_b32 v{t3}, v{t3}, v{t2}")
        a(f"v_mul_lo_u32 v{t3}, v{t3}, s4")
        a(f"v_bfe_u32 v{t1}, v{t1}, 1, 3")
        a(f"v_and_b32 v{t2}, 7, v{LANE}")
        a(f"v_xor_b32 v{t1}, v{t1}, v{t2}")
        a(f"v_lshl_add_u32 v{oX+e}, v{t1}, 4, v{t3}")
    a("s_lshl_b32 s3, s66, 3")
    a(f"v_add_u32 v{t1}, s3, v{t0}")
    a(f"v_bfe_u32 v{t1}, v{t1}, 1, 3")
    a(f"v_xor_b32 v{t1}, v{t1}, v{t2}")
    a("s_lshl_b32 s3, s65, 5"); a("s_lshr_b32 s5, s66, 2"); a("s_lshl_b32 s5, s5, 4"); a("s_add_u32 s3, s3, s5")
    a("s_lshl_b32 s5, s67, 3"); a("s_add_u32 s3, s3, s5")
    a(f"v_add_u32 v{t0}, s3, v{t0}")
    a(f"v_mul_lo_u32 v{t0}, v{t0}, s4")
    a(f"v_lshl_add_u32 v{oB}, v{t1}, 4, v{t0}")
    a(f"v_lshrrev_b32 v{t0}, 4, v{LANE}")
    a(f"v_and_b32 v{t1}, 15, v{LANE}")
    a(f"v_lshlrev_b32 v{t2}, 2, v{t0}")
    a(f"v_xor_b32 v{t1}, v{t1}, v{t2}")
    a("s_lshl_b32 s3, s66, 2")
    a(f"v_add_u32 v{t0}, s3, v{t0}")
    a("s_movk_i32 s4, 3584")
    a(f"v_mul_lo_u32 v{t0}, v{t0}, s4")
    a(f"v_lshl_add_u32 v{oW}, v{t1}, 4, v{t0}")
    a("s_lshl_b32 s3, s65, 8")
    a(f"v_add_u32 v{oW}, s3, v{oW}")
    a(f"s_mul_i32 s73, s64, {128*896}")
    a("s_lshl_b32 s74, s66, 11"); a("s_lshl_b32 s75, s66, 10")
    a("s_waitcnt lgkmcnt(0)")
    srd(a,48,36,37,448*3584); srd(a,52,38,39,448*3584); srd(a,8,16,17,2048*896)
    a("s_and_b32 s3, s66, 2"); a("s_cmp_eq_u32 s3, 0")
    a("s_cselect_b32 s56, s22, s24"); a("s_cselect_b32 s57, s23, s25")
    a("s_and_b32 s57, s57, 0xffff"); a(f"s_mov_b32 s58, {448*896}"); a("s_mov_b32 s59, 0x20000")
    def dma_xb(J):
        slot=J%3
        a(f"s_movk_i32 s76, {J*128}")
        a(f"s_add_u32 m0, s74, {XS+slot*16384}")
        a(f"s_add_u32 s77, s76, s73")
        a(f"buffer_load_dwordx4 v{oX}, s[8:11], s77 offen lds"); a.vm_issue(("x",J))
        a(f"s_add_u32 m0, s74, {XS+slot*16384+1024}")
        a(f"buffer_load_dwordx4 v{oX+1}, s[8:11], s77 offen lds"); a.vm_issue(("x",J))
        a(f"s_add_u32 m0, s75, {BS+slot*8192}")
        a(f"buffer_load_dwordx4 v{oB}, s[56:59], s76 offen lds"); a.vm_issue(("x",J))
    def dma_w(i):
        slot=i%5
        a(f"s_mov_b32 s77, {i*32*3584}")
        a(f"s_add_u32 m0, s75, {WSL+slot*16384}")
        a(f"buffer_load_dwordx4 v{oW}, s[48:51], s77 offen lds"); a.vm_issue(("w",i))
        a(f"s_add_u32 m0, s75, {WSL+slot*16384+8192}")
        a(f"buffer_load_dwordx4 v{oW}, s[52:55], s77 offen lds"); a.vm_issue(("w",i))
    stamp(a,16)
    dma_xb(0); dma_w(0); dma_w(1); dma_xb(1); dma_w(2)
    stamp(a,17)
    def param_loads():
        a(f"v_and_b32 v{t0}, 15, v{LANE}")
        a("s_lshl_b32 s3, s65, 5"); a("s_lshl_b32 s4, s69, 4"); a("s_add_u32 s4, s3, s4")
        a(f"v_add_u32 v{t0}, s4, v{t0}"); a(f"v_lshlrev_b32 v{t0}, 1, v{t0}")
        a(f"v_and_b32 v{t1}, 31, v{LANE}"); a(f"v_add_u32 v{t1}, s3, v{t1}"); a(f"v_lshlrev_b32 v{t1}, 1, v{t1}")
        for k,p in enumerate((18,20,30)):
            a(f"global_load_ushort v{230+k}, v{t0}, s[{p}:{p+1}]"); a.vm_issue("p")
            a(f"global_load_ushort v{233+k}, v{t1}, s[{p}:{p+1}]"); a.vm_issue("p")
    srd(a,60,46,47,WS_SIZE); srd(a,12,44,45,256)
    a(f"v_and_b32 v{t0}, 31, v{LANE}"); a(f"v_lshrrev_b32 v{t1}, 5, v{LANE}")
    a(f"v_bfe_u32 v{t2}, v{t0}, 1, 3"); a(f"v_xor_b32 v{t2}, v{t2}, v{t1}"); a(f"v_lshlrev_b32 v{t2}, 4, v{t2}")
    a(f"v_lshl_add_u32 v{t2}, v{t0}, 7, v{t2}")
    a("s_lshl_b32 s3, s71, 12"); a("s_lshl_b32 s4, s72, 12"); a("s_lshl_b32 s5, s69, 12"); a(f"s_add_u32 s5, s5, {BS}")
    for ks in range(4):
        a(f"v_xor_b32 v{t3}, {ks*32}, v{t2}")
        a(f"v_add_u32 v{vX0+ks}, s3, v{t3}"); a(f"v_add_u32 v{vX1+ks}, s4, v{t3}"); a(f"v_add_u32 v{vB+ks}, s5, v{t3}")
    a(f"v_bfe_u32 v{t0}, v{LANE}, 2, 2")
    a(f"v_lshl_add_u32 v{t2}, v{t1}, 3, v{t0}"); a(f"v_lshlrev_b32 v{t2}, 8, v{t2}")
    a(f"v_xor_b32 v{t0}, s68, v{t0}"); a(f"v_lshl_add_u32 v{t2}, v{t0}, 6, v{t2}")
    a(f"v_bfe_u32 v{t0}, v{LANE}, 4, 1"); a(f"v_lshl_add_u32 v{t2}, v{t0}, 5, v{t2}")
    a(f"v_and_b32 v{t0}, 3, v{LANE}"); a(f"v_lshl_add_u32 v{t2}, v{t0}, 3, v{t2}")
    a(f"v_add_u32 v{vW}, {WSL}, v{t2}"); a(f"v_add_u32 v{vW2}, {WSL+65536}, v{t2}")
    class Rec:
        def __init__(s): s.L=[]
        def __call__(s,x): s.L.append(x)
    real_a=a; a=Rec()
    for k in range(6): a(f"v_lshlrev_b32 v{230+k}, 16, v{230+k}")
    def prep(b,a2,b2):
        a(f"v_mul_f32 v{b+2}, {LOG2E}, v{b+2}"); a(f"v_exp_f32 v{b+2}, v{b+2}"); a(f"v_cvt_pk_bf16_f32 v{b+2}, 0, v{b+2}")
        a(f"v_mul_f32 v{a2}, v{b+2}, v{b}"); a(f"v_mul_f32 v{a2}, {LOG2E}, v{a2}")
        a(f"v_mul_f32 v{b2}, v{b+2}, v{b+1}"); a(f"v_mul_f32 v{b2}, {INV2PI}, v{b2}")
    prep(230,236,237); prep(233,238,239)
    def cpow(dr,di,n,a2,b2):
        a(f"v_mul_f32 v240, {n}, v{a2}"); a(f"v_mul_f32 v241, {n}, v{b2}")
        a(f"v_exp_f32 v240, v240"); a(f"v_rndne_f32 v242, v241"); a(f"v_sub_f32 v241, v241, v242")
        a(f"v_cos_f32 v{dr}, v241"); a(f"v_sin_f32 v{di}, v241")
        a(f"v_mul_f32 v{dr}, v{dr}, v240"); a(f"v_mul_f32 v{di}, v{di}, v240")
    cpow(lr,li,"1.0",236,237); cpow(l8r,l8i,"0x41000000",236,237)
    cpow(s8r,s8i,"0x41000000",238,239); cpow(scr,sci,"0x43000000",238,239)
    a(f"v_lshrrev_b32 v{vseg}, 4, v{LANE}"); a("s_lshl_b32 s3, s71, 2"); a(f"v_add_u32 v{vseg}, s3, v{vseg}")
    a(f"v_lshlrev_b32 v243, 3, v{vseg}"); a(f"v_cvt_f32_u32 v243, v243")
    cpow(pwr,pwi,"v243",236,237)
    a(f"v_add_f32 v240, -1.0, v{lr}")
    a("v_mul_f32 v241, v230, v230"); a("v_fmac_f32 v241, v231, v231"); a("v_rcp_f32 v241, v241"); a("v_add_f32 v241, v241, v241")
    a("v_mul_f32 v242, v240, v230"); a(f"v_fmac_f32 v242, v{li}, v231"); a(f"v_mul_f32 v{cr}, v242, v241")
    a(f"v_mul_f32 v242, v{li}, v230"); a(f"v_fma_f32 v242, -v240, v231, v242"); a(f"v_mul_f32 v{ci}, v242, v241")
    pmath=a.L; a=real_a
    fo1=244; fo2=245; fo3=246; fo4=247
    a(f"v_lshrrev_b32 v{t0}, 5, v{LANE}"); a(f"v_lshlrev_b32 v{fo1}, 4, v{t0}")
    a(f"v_and_b32 v{t0}, 31, v{LANE}"); a(f"v_lshlrev_b32 v{fo2}, 2, v{t0}")
    a(f"v_and_b32 v{t1}, 15, v{LANE}"); a(f"v_bfe_u32 v{t2}, v{LANE}, 4, 1"); a(f"v_mul_u32_u24 v{t2}, 448, v{t2}")
    a(f"v_add_u32 v{t1}, v{t1}, v{t2}"); a(f"v_lshlrev_b32 v{fo3}, 2, v{t1}")
    a(f"v_lshlrev_b32 v{fo4}, 2, v{LANE}")

    def reads(s):
        F=FR[s&1]; i=s//2; J=s//4; ks=s%4; k2=s%2
        xs=(J%3)*16384; bs=(J%3)*8192; slot=i%5
        wb=vW if slot<4 else vW2
        wo=(slot%4)*16384+k2*4096
        a(f"ds_read_b64_tr_b16 v[{F+8}:{F+9}], v{wb} offset:{wo}"); a.lg_issue(s)
        a(f"ds_read_b64_tr_b16 v[{F+10}:{F+11}], v{wb} offset:{wo+1024}"); a.lg_issue(s)
        a(f"ds_read_b128 v[{F}:{F+3}], v{vX0+ks} offset:{xs}"); a.lg_issue(s)
        a(f"ds_read_b128 v[{F+4}:{F+7}], v{vX1+ks} offset:{xs}"); a.lg_issue(s)
        a(f"ds_read_b64_tr_b16 v[{F+12}:{F+13}], v{wb} offset:{wo+8192}"); a.lg_issue(s)
        a(f"ds_read_b64_tr_b16 v[{F+14}:{F+15}], v{wb} offset:{wo+8192+1024}"); a.lg_issue(s)
        a(f"ds_read_b128 v[{F+16}:{F+19}], v{vB+ks} offset:{bs}"); a.lg_issue(s)
    def mf(d,A,B,s):
        c = "0" if s==0 else f"v[{d}:{d+15}]"
        a(f"v_mfma_f32_32x32x16_bf16 v[{d}:{d+15}], v[{A}:{A+3}], v[{B}:{B+3}], {c}")
    def fold_loads():
        a("s_lshl_b32 s3, s65, 2"); a("s_add_u32 s3, s3, s68"); a("s_lshl_b32 s3, s3, 7"); a(f"s_add_u32 s3, s3, {CS_OFF}"); a(f"s_add_u32 s4, s3, {1792*4}")
        for qq in range(4):
            a(f"buffer_load_dwordx4 v[{CSG+4*qq}:{CSG+4*qq+3}], v{fo1}, s[60:63], s3 offen offset:{32*qq} sc1"); a.vm_issue("f")
            a(f"buffer_load_dwordx4 v[{CSU+4*qq}:{CSU+4*qq+3}], v{fo1}, s[60:63], s4 offen offset:{32*qq} sc1"); a.vm_issue("f")
        a("s_lshl_b32 s3, s64, 2"); a("s_add_u32 s4, s3, s72"); a("s_add_u32 s3, s3, s71"); a("s_lshl_b32 s3, s3, 7"); a("s_lshl_b32 s4, s4, 7")
        a(f"s_add_u32 s3, s3, {STM_OFF}"); a(f"s_add_u32 s4, s4, {STM_OFF}"); a(f"s_add_u32 s5, s3, 8192"); a(f"s_add_u32 s6, s4, 8192")
        for qq in range(4):
            a(f"buffer_load_dwordx4 v[{SM+4*qq}:{SM+4*qq+3}], v{fo1}, s[60:63], s3 offen offset:{32*qq} sc1"); a.vm_issue("f")
            a(f"buffer_load_dwordx4 v[{SR+4*qq}:{SR+4*qq+3}], v{fo1}, s[60:63], s5 offen offset:{32*qq} sc1"); a.vm_issue("f")
        a(f"buffer_load_dword v{FM}, v{fo2}, s[60:63], s3 offen sc1"); a.vm_issue("f")
        a(f"buffer_load_dword v{FM+1}, v{fo2}, s[60:63], s5 offen sc1"); a.vm_issue("f")
        a(f"buffer_load_dword v{FM+2}, v{fo2}, s[60:63], s4 offen sc1"); a.vm_issue("f")
        a(f"buffer_load_dword v{FM+3}, v{fo2}, s[60:63], s6 offen sc1"); a.vm_issue("f")
        a("s_lshl_b32 s3, s65, 1"); a("s_add_u32 s3, s3, s69"); a("s_lshl_b32 s3, s3, 6"); a(f"s_add_u32 s3, s3, {CS_OFF+3584*4}")
        a(f"buffer_load_dword v{CSB}, v{fo3}, s[60:63], s3 offen sc1"); a.vm_issue("f")
    stamp(a,21)
    def touch(i):
        if not TOUCH: return
        lab=f"L_TCH{i}"
        if 2<=i<=8:
            t=i-2
            a(f"s_cmp_lg_u32 s66, {t}"); a(f"s_cbranch_scc1 {lab}")
            a("s_lshr_b32 s4, s2, 3"); a("s_and_b32 s3, s4, 3"); a("s_lshr_b32 s4, s4, 2")
            a(f"v_lshrrev_b32 v248, 4, v{LANE}"); a("v_mul_u32_u24 v248, 448, v248"); a(f"v_and_b32 v249, 15, v{LANE}"); a("v_add_u32 v248, v248, v249")
            a("s_lshl_b32 s3, s3, 4"); a(f"s_add_u32 s3, s3, {64*t}"); a("v_add_u32 v248, s3, v248")
            a("v_mul_u32_u24 v248, 896, v248"); a("s_lshl_b32 s4, s4, 7"); a("v_add_u32 v248, s4, v248")
            a("global_load_dword v249, v248, s[40:41]")
            a.label(lab)
        elif i==9:
            a(f"s_cmp_ge_u32 s66, 4"); a(f"s_cbranch_scc1 {lab}")
            a("s_lshr_b32 s4, s2, 3"); a("s_and_b32 s3, s4, 3"); a("s_lshr_b32 s4, s4, 2")
            a("s_lshl_b32 s4, s4, 6"); a("s_lshl_b32 s3, s3, 4"); a("s_add_u32 s3, s3, s4")
            a(f"v_and_b32 v248, 15, v{LANE}"); a("v_add_u32 v248, s3, v248"); a("v_mul_u32_u24 v248, 896, v248")
            a(f"v_lshrrev_b32 v249, 4, v{LANE}"); a("s_and_b32 s3, s66, 1"); a("s_lshl_b32 s3, s3, 2"); a("v_add_u32 v249, s3, v249")
            a("v_min_u32 v249, 6, v249"); a("v_lshl_add_u32 v248, v249, 7, v248")
            a("s_cmp_lt_u32 s66, 2"); a("s_cselect_b32 s4, s26, s28"); a("s_cselect_b32 s5, s27, s29")
            a("global_load_dword v249, v248, s[4:5]")
            a.label(lab)
    a.vm_wait([("x",0),("w",0)])
    a("s_barrier")
    stamp(a,2)
    reads(0)
    CHK_ISSUE=10; CHK=11; FOLD=11
    pm=list(pmath)
    for s in range(28):
        F=FR[s&1]; i=s//2
        a.lg_wait(s)
        if s==27: mf(aS,F,F+16,s)
        mf(aG[0],F+8,F,s); mf(aG[1],F+8,F+4,s)
        if s%2==1 and i<13:
            need=[("w",i+1)]
            if (i+1)%2==0: need.append(("x",(i+1)//2))
            if i==CHK: need.append("c")
            if i==4: need.append("p")
            a.vm_wait(need)
            if i==CHK:
                a("s_mov_b32 s93, 0")
                a.label("L_PCHK")
                a("v_cmp_ne_u32 vcc, 1, v225")
                a("s_nop 1")
                a("s_cmp_eq_u32 vcc_lo, 0")
                a("s_cbranch_scc1 L_PCHK_OK")
                a("s_sleep 2")
                a(f"buffer_load_dword v225, v{fo4}, s[12:15], 0 offen sc1")
                a("s_waitcnt vmcnt(0)")
                a("s_add_u32 s93, s93, 1"); a("s_cmp_lt_u32 s93, 0x40000")
                a("s_cbranch_scc1 L_PCHK")
                a.label("L_PCHK_OK")
            a("s_barrier")
            stamp(a,32+i)
        if s<27: reads(s+1)
        def fill(n):
            if s>=10:
                for _ in range(n):
                    if pm: a(pm.pop(0))
        mf(aU[0],F+12,F,s)
        if s%2==1 and i<13:
            if i==0: dma_w(3)
            if i==1: dma_w(4)
            if i>=1 and i+4<=13: dma_w(i+4)
        fill(5)
        mf(aU[1],F+12,F+4,s)
        if s%2==1 and i<13:
            if i==0: dma_xb(2)
            if i%2==0 and i>=2 and i//2+2<=6: dma_xb(i//2+2)
            if i==2: param_loads()
            touch(i)
            if i==CHK_ISSUE:
                a(f"buffer_load_dword v225, v{fo4}, s[12:15], 0 offen sc1"); a.vm_issue("c")
            if i==FOLD: fold_loads()
        fill(5)
        if s<27: mf(aS,F,F+16,s)
    assert not pm
    stamp(a,3)
    a.vm_wait("f")
    for i in range(16): a(f"v_fma_f32 v{aS+i}, -v{SM+i}, v{CSB}, v{aS+i}")
    for i in range(16): a(f"v_mul_f32 v{aS+i}, v{aS+i}, v{SR+i}")
    re=[aS+j for j in range(8)]; im=[aS+8+j for j in range(8)]
    for j in range(8): a(f"v_permlane16_swap_b32 v{re[j]}, v{im[j]}")
    BU=36
    bur=[BU+j for j in range(8)]; bui=[BU+8+j for j in range(8)]
    for j in range(8): a(f"v_mul_f32 v{bur[j]}, v{cr}, v{re[j]}"); a(f"v_mul_f32 v{bui[j]}, v{cr}, v{im[j]}")
    for j in range(8): a(f"v_fma_f32 v{bur[j]}, -v{ci}, v{im[j]}, v{bur[j]}"); a(f"v_fmac_f32 v{bui[j]}, v{ci}, v{re[j]}")
    hA=(52,53); hB=(54,55)
    a(f"v_and_b32 v{t0}, 15, v{LANE}"); a("s_lshl_b32 s3, s69, 7"); a(f"s_add_u32 s3, s3, {ESCR}")
    a(f"v_lshlrev_b32 v{t0}, 3, v{t0}"); a(f"v_add_u32 v{t0}, s3, v{t0}")
    a(f"v_lshl_add_u32 v{t1}, v{vseg}, 8, v{t0}")
    cur=(bur[0],bui[0])
    for j in range(1,8):
        n = hA if j%2 else hB
        a(f"v_fma_f32 v{n[0]}, v{lr}, v{cur[0]}, v{bur[j]}"); a(f"v_fma_f32 v{n[1]}, v{lr}, v{cur[1]}, v{bui[j]}")
        a(f"v_fma_f32 v{n[0]}, -v{li}, v{cur[1]}, v{n[0]}"); a(f"v_fmac_f32 v{n[1]}, v{li}, v{cur[0]}")
        cur=n
    a(f"ds_write_b64 v{t1}, v[{hA[0]}:{hA[1]}]")
    a("s_waitcnt lgkmcnt(0)")
    a("s_barrier")
    stamp(a,4)
    a("s_and_b32 s3, s2, 7"); a("s_lshr_b32 s4, s2, 3")
    a("s_lshl_b32 s5, s3, 2"); a("s_and_b32 s6, s4, 3"); a("s_add_u32 s88, s5, s6")
    a("s_lshr_b32 s89, s4, 2")
    srd(a,48,40,41,1792*896)
    a("s_cmp_eq_u32 s66, 4")
    a("s_cselect_b32 s56, s26, s28"); a("s_cselect_b32 s57, s27, s29")
    a("s_and_b32 s57, s57, 0xffff"); a(f"s_mov_b32 s58, {448*896}"); a("s_mov_b32 s59, 0x20000")
    a("s_mul_i32 s90, s66, 22528"); a("s_cmp_eq_u32 s66, 5"); a(f"s_cselect_b32 s90, {FIFO[5]}, s90")
    oD=2; oD2=3; rA=[4,5,6,7]; oF=8
    a(f"v_lshlrev_b32 v{oF}, 4, v{LANE}")
    DF=11; DS=12
    def dmaF(s,force=False):
        if force or s%4==0 or s in (NEARLY,DF): a(f"s_mul_i32 s92, s{80+s//4}, {64*896}"); a("s_add_u32 s92, s92, s91")
        a(f"s_add_u32 m0, s90, {(s%DF)*2048}")
        a(f"s_add_u32 s77, s92, {(s%4)*16*896}"); a(f"s_add_u32 s78, s92, {(s%4)*16*896+6144}")
        a(f"buffer_load_dwordx4 v{oD}, s[48:51], s77 offen lds"); a.vm_issue(("w",s))
        a(f"buffer_load_dwordx4 v{oD}, s[48:51], s78 offen offset:1024 lds"); a.vm_issue(("w",s))
    def dmaS(cs,pair):
        a(f"s_lshl_b32 s92, s{80+cs}, 7")
        for e in (2*pair,2*pair+1):
            a(f"s_add_u32 m0, s90, {(cs%3)*8192+(e//4)*4096}")
            a(f"s_add_u32 s77, s92, {e*7168-(e%4)*1024}")
            o = oD if e%2==0 else oD2
            a(f"buffer_load_dwordx4 v{o}, s[56:59], s77 offen offset:{(e%4)*1024} lds"); a.vm_issue(("w",cs*4))
    a("s_cmp_ge_u32 s66, 6"); a("s_cbranch_scc1 L_NOPF")
    a("s_cmp_ge_u32 s66, 4"); a("s_cbranch_scc1 L_PFS")
    a(f"v_lshrrev_b32 v{t0+0}, 3, v{LANE}") if False else None
    tq=[9,10,11,12]
    a(f"v_lshrrev_b32 v{tq[0]}, 3, v{LANE}"); a(f"v_bfe_u32 v{tq[1]}, v{LANE}, 4, 1"); a(f"v_lshlrev_b32 v{tq[1]}, 2, v{tq[1]}")
    a(f"v_and_b32 v{tq[2]}, 7, v{LANE}"); a(f"v_xor_b32 v{tq[1]}, v{tq[1]}, v{tq[2]}")
    a("s_movk_i32 s4, 896"); a(f"v_mul_lo_u32 v{tq[0]}, v{tq[0]}, s4"); a(f"v_lshl_add_u32 v{oD}, v{tq[1]}, 4, v{tq[0]}")
    a("s_lshl_b32 s3, s89, 7"); a(f"v_add_u32 v{oD}, s3, v{oD}")
    a(f"s_mul_i32 s91, s66, {448*896}")
    a(f"v_bfe_u32 v{tq[0]}, v{LANE}, 2, 2"); a(f"v_lshrrev_b32 v{tq[1]}, 5, v{LANE}"); a(f"v_lshl_add_u32 v{tq[1]}, v{tq[1]}, 2, v{tq[0]}")
    a(f"v_lshlrev_b32 v{tq[1]}, 7, v{tq[1]}"); a(f"v_bfe_u32 v{tq[0]}, v{LANE}, 3, 1"); a(f"v_lshl_add_u32 v{tq[1]}, v{tq[0]}, 6, v{tq[1]}")
    a(f"v_bfe_u32 v{tq[0]}, v{LANE}, 4, 1"); a(f"v_lshl_add_u32 v{tq[1]}, v{tq[0]}, 5, v{tq[1]}")
    a(f"v_and_b32 v{tq[0]}, 3, v{LANE}"); a(f"v_lshl_add_u32 v{tq[1]}, v{tq[0]}, 3, v{tq[1]}")
    a(f"v_add_u32 v{rA[0]}, s90, v{tq[1]}"); a(f"v_xor_b32 v{tq[1]}, 64, v{tq[1]}"); a(f"v_add_u32 v{rA[1]}, s90, v{tq[1]}")
    a("s_branch L_NOPF")
    a.label("L_PFS")
    a(f"v_lshrrev_b32 v{tq[0]}, 3, v{LANE}"); a("s_lshl_b32 s3, s89, 6"); a(f"v_add_u32 v{tq[0]}, s3, v{tq[0]}")
    a("s_movk_i32 s4, 896"); a(f"v_mul_lo_u32 v{tq[0]}, v{tq[0]}, s4")
    a(f"v_lshrrev_b32 v{tq[1]}, 4, v{LANE}"); a(f"v_and_b32 v{tq[2]}, 7, v{LANE}"); a(f"v_xor_b32 v{tq[1]}, v{tq[1]}, v{tq[2]}")
    a(f"v_lshl_add_u32 v{oD}, v{tq[1]}, 4, v{tq[0]}"); a(f"v_xor_b32 v{tq[1]}, 4, v{tq[1]}"); a(f"v_lshl_add_u32 v{oD2}, v{tq[1]}, 4, v{tq[0]}")
    a(f"v_and_b32 v{tq[0]}, 31, v{LANE}"); a(f"v_lshrrev_b32 v{tq[1]}, 5, v{LANE}"); a(f"v_bfe_u32 v{tq[2]}, v{tq[0]}, 1, 3")
    a(f"v_xor_b32 v{tq[2]}, v{tq[2]}, v{tq[1]}"); a(f"v_lshlrev_b32 v{tq[2]}, 4, v{tq[2]}"); a(f"v_lshl_add_u32 v{tq[2]}, v{tq[0]}, 7, v{tq[2]}")
    for ks in range(4):
        a(f"v_xor_b32 v{tq[3]}, {ks*32}, v{tq[2]}"); a(f"v_add_u32 v{rA[ks]}, s90, v{tq[3]}")
    a.label("L_NOPF")
    a.vm=[]
    E=188
    a("s_mul_i32 s78, s65, 8192"); a(f"s_add_u32 s79, s78, {T_OFF}")
    a(f"v_and_b32 v56, 31, v{LANE}"); a("v_lshlrev_b32 v57, 4, v56")
    a(f"v_lshlrev_b32 v56, 3, v56"); a(f"v_add_u32 v56, {ESCR}, v56")
    a("s_cmp_lg_u32 s66, 6"); a("s_cbranch_scc1 L_NOPUB")
    for sp in range(16):
        a(f"ds_read_b64 v[{E+2*sp}:{E+2*sp+1}], v56 offset:{sp*256}"); a.lg_issue(("e",sp))
    a.lg_wait(("e",0)); cur=(E,E+1)
    for sp in range(1,16):
        a.lg_wait(("e",sp)); n=(E+2*sp,E+2*sp+1)
        a(f"v_fmac_f32 v{n[0]}, v{s8r}, v{cur[0]}"); a(f"v_fmac_f32 v{n[1]}, v{s8r}, v{cur[1]}")
        a(f"v_fma_f32 v{n[0]}, -v{s8i}, v{cur[1]}, v{n[0]}"); a(f"v_fmac_f32 v{n[1]}, v{s8i}, v{cur[0]}")
        cur=n
    a(f"v_mov_b32 v60, v{cur[0]}"); a("v_mov_b32 v61, 1"); a(f"v_mov_b32 v62, v{cur[1]}"); a("v_mov_b32 v63, 1")
    a("s_lshl_b32 s3, s64, 9"); a("s_add_u32 s3, s3, s79")
    a("s_mov_b64 exec, 0xffffffff")
    a("buffer_store_dwordx4 v[60:63], v57, s[60:63], s3 offen sc0 sc1")
    a("s_mov_b64 exec, -1")
    a.nop(2)
    a.label("L_NOPUB")
    for sp in range(15):
        a(f"ds_read_b64 v[{E+2*sp}:{E+2*sp+1}], v{t0} offset:{sp*256}"); a.lg_issue(("e",sp))
    c0r,c0i=58,59
    a(f"v_mov_b32 v{c0r}, 0"); a(f"v_mov_b32 v{c0i}, 0")
    rl=[60,61]
    for t in range(2): a(f"v_mul_f32 v{rl[t]}, {NLOG2E}, v{FM+2*t+1}")
    P=[228,236]
    def ffn_group(t,g4):
        idx=range(4*g4,4*g4+4); X=[64+k for k in range(4)]
        m=FM+2*t
        for i in idx: a(f"v_fma_f32 v{aG[t]+i}, -v{m}, v{CSG+i}, v{aG[t]+i}")
        for i in idx: a(f"v_fma_f32 v{aU[t]+i}, -v{m}, v{CSU+i}, v{aU[t]+i}")
        for k,i in enumerate(idx): a(f"v_mul_f32 v{X[k]}, v{rl[t]}, v{aG[t]+i}")
        for k,i in enumerate(idx): a(f"v_exp_f32 v{X[k]}, v{X[k]}")
        for i in idx: a(f"v_mul_f32 v{aU[t]+i}, v{aU[t]+i}, v{aG[t]+i}")
        for k,i in enumerate(idx): a(f"v_add_f32 v{X[k]}, 1.0, v{X[k]}")
        for k,i in enumerate(idx): a(f"v_rcp_f32 v{X[k]}, v{X[k]}")
        yield
        for k,i in enumerate(idx): a(f"v_mul_f32 v{aU[t]+i}, v{aU[t]+i}, v{X[k]}")
        for k in range(2): a(f"v_cvt_pk_bf16_f32 v{P[t]+2*g4+k}, v{aU[t]+4*g4+2*k}, v{aU[t]+4*g4+2*k+1}")
    def prefix_steps():
        a.lg_wait(("e",0)); cur=(E,E+1)
        for sp in range(1,16):
            a(f"v_cmp_eq_u32 vcc, {sp}, v{vseg}")
            if sp<15:
                a.lg_wait(("e",sp)); n=(E+2*sp,E+2*sp+1)
                a(f"v_fmac_f32 v{n[0]}, v{l8r}, v{cur[0]}"); a(f"v_fmac_f32 v{n[1]}, v{l8r}, v{cur[1]}")
            a(f"v_cndmask_b32 v{c0r}, v{c0r}, v{cur[0]}, vcc"); a(f"v_cndmask_b32 v{c0i}, v{c0i}, v{cur[1]}, vcc")
            if sp<15:
                a(f"v_fma_f32 v{n[0]}, -v{l8i}, v{cur[1]}, v{n[0]}"); a(f"v_fmac_f32 v{n[1]}, v{l8i}, v{cur[0]}")
                cur=n
            yield
    pf=prefix_steps()
    def a_store(t):
        tile = "s71" if t==0 else "s72"
        a(f"s_lshl_b32 s3, s64, 2"); a(f"s_add_u32 s3, s3, {tile}"); a("s_mul_i32 s3, s3, 112")
        a("s_lshl_b32 s4, s65, 2"); a("s_add_u32 s4, s4, s68"); a("s_lshl_b32 s4, s4, 1")
        a("s_add_u32 s3, s3, s4"); a("s_lshl_b32 s3, s3, 10"); a(f"s_add_u32 s3, s3, {A_OFF}")
        a(f"buffer_store_dwordx4 v[{P[t]}:{P[t]+3}], v{oF}, s[60:63], s3 offen sc0 sc1")
        a(f"buffer_store_dwordx4 v[{P[t]+4}:{P[t]+7}], v{oF}, s[60:63], s3 offen offset:1024 sc0 sc1")
    TBL=[76,80,84,88,108,112,116,120,140,144,148,152,248,68,72]
    def poll_loads():
        for j in range(15):
            if j%8==0: a(f"s_add_u32 s3, s79, {j*512}")
            a(f"buffer_load_dwordx4 v[{TBL[j]}:{TBL[j]+3}], v57, s[60:63], s3 offen offset:{(j%8)*512} sc0 sc1")
    for t in range(2):
        for g4 in range(4):
            g=ffn_group(t,g4); next(g)
            next(pf,None); next(pf,None)
            for _ in g: pass
            k=4*t+g4
            if k<NEARLY:
                a("s_cmp_ge_u32 s66, 6"); a(f"s_cbranch_scc1 L_E{k}")
                a("s_cmp_ge_u32 s66, 4"); a(f"s_cbranch_scc1 L_ES{k}")
                dmaF(k,True); a(f"s_branch L_E{k}")
                a.label(f"L_ES{k}"); dmaS(k//4,k%4)
                a.label(f"L_E{k}")
        a_store(t)
        if t==0:
            a("s_cmp_lg_u32 s66, 7"); a("s_cbranch_scc1 L_NOP1")
            a("s_cmp_eq_u32 s64, 0"); a("s_cbranch_scc1 L_NOP1")
            poll_loads()
            a.label("L_NOP1")
    for _ in pf: pass
    stamp(a,5)
    Gr,Gi=64,65; G2=(66,67)
    a("s_cmp_lg_u32 s66, 7"); a("s_cbranch_scc1 L_NOPOLL")
    a(f"v_mov_b32 v{Gr}, 0"); a(f"v_mov_b32 v{Gi}, 0")
    a("s_mov_b32 s93, 0")
    a("s_cmp_eq_u32 s64, 0"); a("s_cbranch_scc1 L_GDONE")
    a("s_branch L_POLL1")
    a.label("L_POLL")
    poll_loads()
    a.label("L_POLL1")
    a(f"v_mov_b32 v{Gr}, 0"); a(f"v_mov_b32 v{Gi}, 0")
    a("s_mov_b64 s[4:5], -1")
    a("s_waitcnt vmcnt(0)")
    for j in range(15):
        b=TBL[j]
        if j>0:
            a(f"s_cmp_le_u32 s64, {j}"); a("s_cbranch_scc1 L_LEND")
        a(f"v_and_b32 v{b+1}, v{b+1}, v{b+3}")
        a(f"v_fma_f32 v{G2[0]}, v{scr}, v{Gr}, v{b}"); a(f"v_fma_f32 v{G2[1]}, v{scr}, v{Gi}, v{b+2}")
        a(f"v_cmp_eq_u32 vcc, 1, v{b+1}")
        a(f"v_fma_f32 v{G2[0]}, -v{sci}, v{Gi}, v{G2[0]}"); a(f"v_fma_f32 v{Gi}, v{sci}, v{Gr}, v{G2[1]}")
        a(f"v_mov_b32 v{Gr}, v{G2[0]}")
        a("s_and_b64 s[4:5], s[4:5], vcc")
    a.label("L_LEND")
    a("s_cmp_eq_u64 s[4:5], -1"); a("s_cbranch_scc1 L_GDONE")
    a("s_add_u32 s93, s93, 1"); a("s_cmp_lt_u32 s93, 0x40000"); a("s_cbranch_scc1 L_POLL")
    a.label("L_GDONE")
    a.nop(2)
    a(f"ds_write_b64 v56, v[{Gr}:{Gi}] offset:4096")
    a("s_waitcnt lgkmcnt(0)")
    a.label("L_NOPOLL")
    a("s_barrier")
    stamp(a,6)
    a(f"ds_read_b64 v[{Gr}:{Gi}], v{t0} offset:4096")
    a(f"v_and_b32 v{t1}, 15, v{LANE}"); a(f"v_mul_u32_u24 v{t1}, 72, v{t1}")
    a(f"v_bfe_u32 v{t2}, v{LANE}, 4, 1"); a(f"v_lshl_add_u32 v{t1}, v{t2}, 5, v{t1}")
    a(f"v_lshrrev_b32 v68, 5, v{LANE}"); a(f"v_lshl_add_u32 v{t1}, v68, 3, v{t1}")
    a("s_mul_i32 s3, s66, 2304"); a(f"s_add_u32 s3, s3, {TRS}")
    a(f"v_add_u32 v{t1}, s3, v{t1}")
    a(f"v_bfe_u32 v69, v{LANE}, 2, 2"); a(f"v_lshl_add_u32 v69, v68, 3, v69"); a(f"v_mul_u32_u24 v69, 72, v69")
    a(f"v_lshl_add_u32 v69, v{t2}, 5, v69"); a(f"v_and_b32 v68, 3, v{LANE}"); a(f"v_lshl_add_u32 v69, v68, 3, v69")
    a(f"v_add_u32 v69, s3, v69")
    a("s_waitcnt lgkmcnt(0)")
    a(f"v_fmac_f32 v{c0r}, v{pwr}, v{Gr}"); a(f"v_fmac_f32 v{c0i}, v{pwr}, v{Gi}")
    a(f"v_fma_f32 v{c0r}, -v{pwi}, v{Gi}, v{c0r}"); a(f"v_fmac_f32 v{c0i}, v{pwi}, v{Gr}")
    cur=(c0r,c0i)
    for j in range(8):
        n=(bur[j],bui[j])
        a(f"v_fmac_f32 v{n[0]}, v{lr}, v{cur[0]}"); a(f"v_fmac_f32 v{n[1]}, v{lr}, v{cur[1]}")
        a(f"v_fma_f32 v{n[0]}, -v{li}, v{cur[1]}, v{n[0]}"); a(f"v_fmac_f32 v{n[1]}, v{li}, v{cur[0]}")
        cur=n
    PK=76
    for j in range(4):
        a(f"v_cvt_pk_bf16_f32 v{PK+j}, v{bur[2*j]}, v{bur[2*j+1]}"); a(f"v_cvt_pk_bf16_f32 v{PK+4+j}, -v{bui[2*j]}, -v{bui[2*j+1]}")
    a(f"ds_write_b64 v{t1}, v[{PK}:{PK+1}]"); a(f"ds_write_b64 v{t1}, v[{PK+2}:{PK+3}] offset:16")
    a(f"ds_write_b64 v{t1}, v[{PK+4}:{PK+5}] offset:{16*72}"); a(f"ds_write_b64 v{t1}, v[{PK+6}:{PK+7}] offset:{16*72+16}")
    a("s_lshl_b32 s3, s64, 2"); a("s_add_u32 s3, s3, s71"); a("s_mul_i32 s3, s3, 56")
    a("s_lshl_b32 s4, s65, 1"); a("s_add_u32 s4, s4, s69"); a("s_add_u32 s3, s3, s4")
    a("s_lshl_b32 s3, s3, 10"); a(f"s_add_u32 s3, s3, {H_OFF}"); a(f"s_add_u32 s4, s3, {28*1024}")
    a("s_waitcnt lgkmcnt(0)")
    for sidx in range(2):
        for t in range(2):
            a(f"ds_read_b64_tr_b16 v[{84+4*sidx+2*t}:{84+4*sidx+2*t+1}], v69 offset:{(16*sidx+4*t)*72}")
    a("s_waitcnt lgkmcnt(0)")
    a(f"buffer_store_dwordx4 v[84:87], v{oF}, s[60:63], s3 offen sc0 sc1")
    a(f"buffer_store_dwordx4 v[88:91], v{oF}, s[60:63], s4 offen sc0 sc1")
    stamp(a,7)
    a("s_waitcnt vmcnt(0)")
    a("s_barrier")
    stamp(a,8)
    a("s_cmp_lg_u32 s66, 7"); a("s_cbranch_scc1 L_NOFLAG")
    a("s_lshl_b32 s3, s64, 8"); a("s_lshl_b32 s4, s65, 2"); a("s_add_u32 s3, s3, s4"); a(f"s_add_u32 s3, s3, {FL_OFF}")
    a("v_mov_b32 v32, 1"); a("v_mov_b32 v33, 0")
    a("s_mov_b64 exec, 1")
    a("buffer_store_dword v32, v33, s[60:63], s3 offen sc0 sc1")
    a("s_mov_b64 exec, 0x3fff")
    a("s_lshr_b32 s3, s88, 1"); a("s_lshl_b32 s3, s3, 8"); a(f"s_add_u32 s3, s3, {FL_OFF}")
    a(f"v_lshlrev_b32 v33, 2, v{LANE}")
    a("s_mov_b32 s93, 0")
    a.label("L_FPOLL")
    a("buffer_load_dword v32, v33, s[60:63], s3 offen sc0 sc1")
    a("s_waitcnt vmcnt(0)")
    a("v_cmp_ne_u32 vcc, 1, v32")
    a("s_add_u32 s93, s93, 1")
    a("s_cmp_eq_u32 vcc_lo, 0"); a("s_cbranch_scc1 L_FOK")
    a("s_cmp_lt_u32 s93, 0x40000"); a("s_cbranch_scc1 L_FPOLL")
    a.label("L_FOK")
    a("s_mov_b64 exec, -1")
    a.label("L_NOFLAG")
    srd(a,68,42,43,2048*448*4)
    EX=10
    a(f"v_and_b32 v24, 15, v{LANE}"); a("s_lshl_b32 s3, s89, 6"); a(f"v_lshl_add_u32 v24, v24, 2, s3")
    a(f"v_lshlrev_b32 v25, 1, v24")
    a(f"global_load_dwordx2 v[30:31], v25, s[32:33]")
    for g in range(2):
        a(f"v_lshrrev_b32 v26, 4, v{LANE}"); a(f"v_lshlrev_b32 v26, 4, v26")
        a(f"s_lshl_b32 s3, s66, 1"); a(f"s_add_u32 s3, s3, {g}")
        a(f"v_add_u32 v26, s3, v26")
        a(f"v_and_b32 v27, 31, v26"); tau(a,28,27,29)
        a(f"v_and_b32 v29, 32, v26"); a("v_or_b32 v28, v28, v29")
        a("s_lshl_b32 s3, s88, 6"); a("v_add_u32 v28, s3, v28")
        a("s_movk_i32 s4, 896"); a("v_mul_lo_u32 v28, v28, s4"); a("v_add_u32 v28, v28, v25")
        a(f"buffer_load_dwordx2 v[{EX+6*g}:{EX+6*g+1}], v28, s[8:11], 0 offen")
        a(f"v_lshlrev_b32 v{22+g}, 1, v28")
        a("v_add_u32 v26, s3, v26"); a("v_lshlrev_b32 v26, 2, v26")
        a(f"s_mov_b32 s4, {STM_OFF}"); a(f"s_mov_b32 s5, {STR_OFF}"); a(f"s_mov_b32 s6, {STD_OFF}")
        a(f"buffer_load_dword v{EX+6*g+2}, v26, s[60:63], s4 offen sc1")
        a(f"buffer_load_dword v{EX+6*g+3}, v26, s[60:63], s5 offen sc1")
        a(f"buffer_load_dword v{EX+6*g+4}, v26, s[60:63], s6 offen sc1")
    T=[232,240]
    def tterm():
        a("v_lshlrev_b32 v24, 16, v30"); a("v_and_b32 v25, 0xffff0000, v30"); a("v_lshlrev_b32 v26, 16, v31"); a("v_and_b32 v27, 0xffff0000, v31")
        for g in range(2):
            xr=EX+6*g; m=xr+2; r=xr+3; dn=xr+4; Tg=T[g]
            a(f"v_lshlrev_b32 v{Tg}, 16, v{xr}"); a(f"v_and_b32 v{Tg+1}, 0xffff0000, v{xr}")
            a(f"v_lshlrev_b32 v{Tg+2}, 16, v{xr+1}"); a(f"v_and_b32 v{Tg+3}, 0xffff0000, v{xr+1}")
            for k in range(4): a(f"v_sub_f32 v{Tg+4+k}, v{Tg+k}, v{m}")
            for k in range(4): a(f"v_cvt_pk_bf16_f32 v{Tg+4+k}, 0, v{Tg+4+k}")
            for k in range(4): a(f"v_mul_f32 v{248+k}, v{Tg+4+k}, v{r}")
            for k in range(4): a(f"v_fma_f32 v{Tg+4+k}, -v{248+k}, v{dn}, v{Tg+4+k}")
            for k in range(4): a(f"v_fma_f32 v{Tg+4+k}, v{Tg+4+k}, v{r}, v{248+k}")
            for k in range(4): a(f"v_cvt_pk_bf16_f32 v{Tg+4+k}, 0, v{Tg+4+k}")
            for k in range(4): a(f"v_mul_f32 v{Tg+4+k}, v{Tg+4+k}, v{24+k}")
            for k in range(4): a(f"v_cvt_pk_bf16_f32 v{Tg+4+k}, 0, v{Tg+4+k}")
            a(f"v_mul_f32 v{28+g}, v{r}, v{r}")
    AF=[32,40]; ACC=[48,64,80,96]; BF=112
    def mainloop(role):
        D = DF if role=="F" else DS
        a.vm=["pre"]*9; a.lg=[]
        for s in range(NEARLY,D):
            dmaF(s) if role=="F" else dmaS(s//4,s%4)
        if role=="F":
            a("s_lshl_b32 s3, s88, 1"); a("s_mul_i32 s3, s3, 112"); a("s_mul_i32 s4, s66, 28"); a("s_add_u32 s3, s3, s4")
            a("s_lshl_b32 s3, s3, 10"); a(f"s_add_u32 s73, s3, {A_OFF}"); TT=112*1024
        else:
            a("s_lshl_b32 s3, s88, 1"); a("s_mul_i32 s3, s3, 56"); a("s_sub_u32 s4, s66, 4"); a("s_mul_i32 s4, s4, 28"); a("s_add_u32 s3, s3, s4")
            a("s_lshl_b32 s3, s3, 10"); a(f"s_add_u32 s73, s3, {H_OFF}"); TT=56*1024
        a("s_barrier")
        stamp(a,9)
        def ld_frag(s):
            b=BF+(s%D)*8
            if s%4==0:
                a(f"s_lshl_b32 s75, s{80+s//4}, 12"); a("s_add_u32 s75, s75, s73"); a(f"s_add_u32 s76, s75, {TT}")
            a(f"buffer_load_dwordx4 v[{b}:{b+3}], v{oF}, s[60:63], s75 offen offset:{(s%4)*1024} sc1"); a.vm_issue(("b",s))
            a(f"buffer_load_dwordx4 v[{b+4}:{b+7}], v{oF}, s[60:63], s76 offen offset:{(s%4)*1024} sc1"); a.vm_issue(("b",s))
        def reads(s):
            F=AF[s&1]
            if role=="F":
                o=(s%D)*2048
                for dt in range(2):
                    a(f"ds_read_b64_tr_b16 v[{F+4*dt}:{F+4*dt+1}], v{rA[dt]} offset:{o}"); a.lg_issue(s)
                    a(f"ds_read_b64_tr_b16 v[{F+4*dt+2}:{F+4*dt+3}], v{rA[dt]} offset:{o+1024}"); a.lg_issue(s)
            else:
                o=((s//4)%3)*8192
                for dt in range(2):
                    a(f"ds_read_b128 v[{F+4*dt}:{F+4*dt+3}], v{rA[s%4]} offset:{o+dt*4096}"); a.lg_issue(s)
        R0=4
        nxt=[0]
        def more(n,lim):
            for _ in range(n):
                if nxt[0]<28 and nxt[0]<lim: ld_frag(nxt[0]); nxt[0]+=1
        more(R0,28)
        a.vm_wait("pre"); tterm()
        wtag = (lambda s: ("w",s)) if role=="F" else (lambda s: ("w",(s//4)*4))
        a.vm_wait(wtag(0)); reads(0)
        for s in range(28):
            F=AF[s&1]; b=BF+(s%D)*8
            if s<27:
                a.vm_wait(wtag(s+1)); reads(s+1)
            a.vm_wait(("b",s)); a.lg_wait(s)
            if s==0: stamp(a,10)
            for dt in range(2):
                for tt in range(2):
                    d=ACC[dt*2+tt]; c="0" if s==0 else f"v[{d}:{d+15}]"
                    a(f"v_mfma_f32_32x32x16_bf16 v[{d}:{d+15}], v[{F+4*dt}:{F+4*dt+3}], v[{b+4*tt}:{b+4*tt+3}], {c}")
            more(2, s+1+DFR)
            if role=="F":
                if s+D<28: dmaF(s+D)
            else:
                if s>=3:
                    cs=(s-3)//4; pair=(s-3)%4
                    if cs+3<7: dmaS(cs+3,pair)
        stamp(a,11)
        a(f"v_and_b32 v2, 31, v{LANE}"); a(f"v_mul_u32_u24 v2, 272, v2"); a(f"v_lshrrev_b32 v3, 5, v{LANE}")
        a(f"v_lshl_add_u32 v2, v3, 4, v2"); a(f"v_add_u32 v2, s90, v2")
        for dt in range(2):
            for tt in range(2):
                d=ACC[dt*2+tt]
                for q in range(4):
                    a(f"ds_write_b128 v2, v[{d+4*q}:{d+4*q+3}] offset:{tt*32*272+dt*128+q*32}")
        a("s_waitcnt lgkmcnt(0)")
        a("s_branch L_FIN")
    a("s_cmp_ge_u32 s66, 6"); a("s_cbranch_scc1 L_IDLE")
    a("s_cmp_ge_u32 s66, 4"); a("s_cbranch_scc1 L_SROLE")
    mainloop("F")
    a.label("L_SROLE"); mainloop("S")
    a.label("L_IDLE")
    a("s_barrier")
    a("s_waitcnt vmcnt(0)")
    tterm()
    a.label("L_FIN")
    a("s_barrier")
    stamp(a,12)
    a.lg=[]
    a(f"v_lshrrev_b32 v2, 4, v{LANE}"); a(f"v_lshlrev_b32 v2, 4, v2"); a("s_lshl_b32 s3, s66, 1"); a(f"v_add_u32 v2, s3, v2")
    a(f"v_mul_u32_u24 v2, 272, v2"); a(f"v_and_b32 v3, 15, v{LANE}"); a(f"v_lshl_add_u32 v2, v3, 4, v2")
    a(f"v_add_u32 v3, {FIFO[3]}, v2")
    PB=48
    for g in range(2):
        for p in range(6):
            r=PB+(g*6+p)*4
            base,off = (2,FIFO[p]) if p<3 else (3,FIFO[p]-FIFO[3])
            a(f"ds_read_b128 v[{r}:{r+3}], v{base} offset:{off+g*272}"); a.lg_issue(("p",g))
    for g in range(2):
        a.lg_wait(("p",g))
        r=PB+g*24; Tg=T[g]
        K=range(4)
        for k in K: a(f"v_add_f32 v{r+k}, v{r+k}, v{r+k+4}")
        for k in K: a(f"v_add_f32 v{r+k+8}, v{r+k+8}, v{r+k+12}")
        for k in K: a(f"v_add_f32 v{r+k+16}, v{r+k+16}, v{r+k+20}")
        for k in K: a(f"v_add_f32 v{r+k}, v{r+k}, v{r+k+8}")
        for k in K: a(f"v_mul_f32 v{r+k}, v{r+k}, v{28+g}")
        for k in K: a(f"v_cvt_pk_bf16_f32 v{r+k}, 0, v{r+k}")
        for k in K: a(f"v_mul_f32 v{r+k+4}, {NLOG2E}, v{r+k}")
        for k in K: a(f"v_exp_f32 v{r+k+4}, v{r+k+4}")
        for k in K: a(f"v_add_f32 v{r+k+16}, v{r+k+16}, v{Tg+4+k}")
        for k in K: a(f"v_add_f32 v{r+k+4}, 1.0, v{r+k+4}")
        for k in K: a(f"v_rcp_f32 v{r+k+4}, v{r+k+4}")
        a("s_nop 0")
        for k in K: a(f"v_mul_f32 v{r+k}, v{r+k}, v{r+k+4}")
        for k in K: a(f"v_cvt_pk_bf16_f32 v{r+k}, 0, v{r+k}")
        for k in K: a(f"v_fma_f32 v{r+k+8}, v{r+k}, v{r+k+16}, v{Tg+k}")
        a(f"buffer_store_dwordx4 v[{r+8}:{r+11}], v{22+g}, s[68:71], 0 offen")
    if STAMP: a("s_waitcnt vmcnt(0)")
    stamp(a,13); stamp_rt(a,14); stamp_flush(a)
    a("s_endpgm")
    a.label("L_SPARE")
    a("s_sub_u32 s64, s2, 224")
    a(f"v_and_b32 v3, 31, v{LANE}")
    a(f"v_lshrrev_b32 v2, 5, v{LANE}")
    a("s_waitcnt lgkmcnt(0)")
    srd(a,8,16,17,2048*896); srd(a,60,46,47,WS_SIZE); srd(a,12,44,45,256)
    srd(a,48,36,37,448*3584); srd(a,52,38,39,448*3584)
    a("s_cmp_lt_u32 s64, 16")
    a("s_cselect_b32 s56, s22, s24"); a("s_cselect_b32 s57, s23, s25")
    a("s_and_b32 s57, s57, 0xffff"); a(f"s_mov_b32 s58, {448*896}"); a("s_mov_b32 s59, 0x20000")
    for i in range(4): a(f"v_mov_b32 v{4+i}, 0")
    a("v_cmp_gt_u32 vcc, 232, v0")
    a("s_and_saveexec_b64 s[4:5], vcc")
    a("s_cbranch_execz L_SP1")
    a("v_lshlrev_b32 v8, 4, v0"); a("s_mul_i32 s3, s64, 3712"); a(f"s_add_u32 s3, s3, {T_OFF}")
    a("buffer_store_dwordx4 v[4:7], v8, s[60:63], s3 offen sc0 sc1")
    a.label("L_SP1")
    a("s_mov_b64 exec, s[4:5]")
    XR=32
    for i in range(48): a(f"v_mov_b32 v{XR+i}, 0")
    a("s_lshl_b32 s3, s64, 6"); a("s_lshl_b32 s4, s66, 3"); a("s_add_u32 s65, s3, s4")
    a("v_add_u32 v9, s65, v2")
    a("s_movk_i32 s4, 896"); a("v_mul_lo_u32 v10, v9, s4"); a("v_lshl_add_u32 v10, v3, 4, v10")
    a("s_and_b32 s3, s64, 15"); a("s_mul_i32 s3, s3, 28"); a("s_lshl_b32 s5, s66, 2"); a("s_add_u32 s3, s3, s5")
    a("v_add_u32 v11, s3, v2")
    a("v_mul_lo_u32 v12, v11, s4"); a("v_lshl_add_u32 v12, v3, 4, v12")
    a("v_cmp_gt_u32 vcc, 28, v3")
    a("s_and_saveexec_b64 s[4:5], vcc")
    a("s_mov_b64 s[6:7], exec")
    for it in range(4):
        a(f"s_movk_i32 s3, {it*1792}")
        a(f"buffer_load_dwordx4 v[{XR+8*it}:{XR+8*it+3}], v10, s[8:11], s3 offen"); a.vm_issue("x")
        a(f"buffer_load_dwordx4 v[{XR+8*it+4}:{XR+8*it+7}], v10, s[8:11], s3 offen offset:448"); a.vm_issue("x")
    a("s_cmp_ge_u32 s66, 7"); a("s_cbranch_scc1 L_SP2")
    for it in range(2):
        a(f"s_movk_i32 s3, {it*1792}")
        a(f"buffer_load_dwordx4 v[{64+8*it}:{64+8*it+3}], v12, s[56:59], s3 offen")
        a(f"buffer_load_dwordx4 v[{64+8*it+4}:{64+8*it+7}], v12, s[56:59], s3 offen offset:448")
    a.label("L_SP2")
    a("s_mov_b64 exec, s[4:5]")
    WR=80
    a("s_cmp_ge_u32 s64, 28"); a("s_cbranch_scc1 L_SP3")
    a(f"v_lshrrev_b32 v13, 3, v{LANE}"); a("s_mul_i32 s3, s66, 56"); a("v_add_u32 v13, s3, v13")
    a("s_movk_i32 s4, 3584"); a("v_mul_lo_u32 v13, v13, s4")
    a(f"v_and_b32 v14, 7, v{LANE}"); a("v_lshl_add_u32 v13, v14, 4, v13")
    a("s_lshl_b32 s3, s64, 7"); a("v_add_u32 v13, s3, v13")
    for k in range(7):
        a(f"s_mov_b32 s3, {k*8*3584}")
        for m,sd in enumerate((48,52)):
            a(f"buffer_load_dwordx4 v[{WR+28*m+4*k}:{WR+28*m+4*k+3}], v13, s[{sd}:{sd+3}], s3 offen")
    a.label("L_SP3")
    stamp(a,16)
    S=[16,17,18,19]; S2=[20,21,22,23]; TM=[24,25,26,27,28,29]; SB=[30,31]
    U=140
    ONES="0x3f803f80"
    a(f"s_mov_b32 s70, {ONES}"); a("s_mov_b32 s71, 0x3f80"); a("s_mov_b32 s72, 0x3f800000")
    a("s_cmp_ge_u32 s64, 28"); a("s_cbranch_scc1 L_SPW0")
    a("s_waitcnt vmcnt(14)"); a("s_branch L_SPW1")
    a.label("L_SPW0"); a("s_waitcnt vmcnt(0)")
    a.label("L_SPW1")
    stamp(a,17)
    for it in range(4): a(f"v_mov_b32 v{S[it]}, 0")
    for it in range(2): a(f"v_mov_b32 v{SB[it]}, 0")
    for i in range(8):
        for it in range(4): a(f"v_dot2c_f32_bf16 v{S[it]}, s70, v{XR+8*it+i}")
        for it in range(2): a(f"v_dot2c_f32_bf16 v{SB[it]}, s70, v{64+8*it+i}")
    a.nop(4)
    for it in range(4):
        for i in range(8):
            a(f"v_lshlrev_b32 v{U+16*it+2*i}, 16, v{XR+8*it+i}"); a(f"v_and_b32 v{U+16*it+2*i+1}, 0xffff0000, v{XR+8*it+i}")
    allreduce32_multi(a,S+SB,TM)
    for it in range(4): a(f"v_mul_f32 v{S[it]}, {INV448}, v{S[it]}"); a(f"v_mov_b32 v{S2[it]}, 0")
    a("s_mov_b64 exec, s[6:7]")
    for i in range(16):
        for it in range(4): a(f"v_sub_f32 v{U+16*it+i}, v{U+16*it+i}, v{S[it]}")
        for it in range(4): a(f"v_fmac_f32 v{S2[it]}, v{U+16*it+i}, v{U+16*it+i}")
    a("s_mov_b64 exec, -1")
    a.nop(5)
    allreduce32_multi(a,S2,TM[:4])
    for it in range(4): a(f"v_mul_f32 v{S2[it]}, {INV448}, v{S2[it]}")
    for it in range(4): a(f"v_cvt_pk_bf16_f32 v{S[it]}, 0, v{S[it]}"); a(f"v_cvt_pk_bf16_f32 v{S2[it]}, 0, v{S2[it]}")
    for it in range(4): a(f"v_add_f32 v{S2[it]}, 0x3727c5ac, v{S2[it]}")
    for it in range(4): a(f"v_cvt_pk_bf16_f32 v{S2[it]}, 0, v{S2[it]}")
    for it in range(4): a(f"v_sqrt_f32 v{S2[it]}, v{S2[it]}")
    for it in range(4): a(f"v_cvt_pk_bf16_f32 v{S2[it]}, 0, v{S2[it]}")
    for it in range(4): a(f"v_rcp_f32 v{TM[it]}, v{S2[it]}")
    for arr,dst in ((S,204),(TM,205),(S2,206)):
        a(f"v_mov_b32 v{dst}, v{arr[0]}")
    for it in range(1,4):
        a(f"v_cmp_eq_u32 vcc, {it}, v3")
        a.nop(1)
        for arr,dst in ((S,204),(TM,205),(S2,206)):
            a(f"v_cndmask_b32 v{dst}, v{dst}, v{arr[it]}, vcc")
    a("v_cmp_eq_u32 vcc, 1, v3"); a.nop(1); a(f"v_cndmask_b32 v{SB[0]}, v{SB[0]}, v{SB[1]}, vcc")
    a("v_lshl_add_u32 v207, v3, 1, v9")
    a("v_and_b32 v208, 31, v207"); tau_inv(a,209,208,210)
    a("v_and_b32 v207, 0xffffffe0, v207"); a("v_or_b32 v207, v207, v209"); a("v_lshlrev_b32 v207, 2, v207")
    a("v_lshl_add_u32 v208, v3, 1, v11"); a("v_lshlrev_b32 v208, 2, v208")
    a("s_mov_b32 s4, 15"); a("s_mov_b32 s5, 15"); a("s_mov_b64 exec, s[4:5]")
    a(f"s_mov_b32 s3, {STM_OFF}"); a(f"buffer_store_dword v204, v207, s[60:63], s3 offen sc0 sc1")
    a(f"s_mov_b32 s3, {STR_OFF}"); a(f"buffer_store_dword v205, v207, s[60:63], s3 offen sc0 sc1")
    a(f"s_mov_b32 s3, {STD_OFF}"); a(f"buffer_store_dword v206, v207, s[60:63], s3 offen sc0 sc1")
    a("s_cmp_ge_u32 s66, 7"); a("s_cbranch_scc1 L_SP4")
    a("s_mov_b32 s4, 3"); a("s_mov_b32 s5, 3"); a("s_mov_b64 exec, s[4:5]")
    a("s_lshr_b32 s3, s64, 4"); a("s_mul_i32 s3, s3, 1792"); a(f"s_add_u32 s3, s3, {CS_OFF+3584*4}")
    a(f"buffer_store_dword v{SB[0]}, v208, s[60:63], s3 offen sc0 sc1")
    a.label("L_SP4")
    a("s_mov_b64 exec, -1")
    stamp(a,18)
    a("s_cmp_ge_u32 s64, 28"); a("s_cbranch_scc1 L_SP6")
    C=140
    for k in range(7):
        a(f"s_waitcnt vmcnt({3+2*(6-k)})")
        D0 = C if k==0 else 160
        for m in range(2):
            for e in range(4):
                a(f"v_lshlrev_b32 v{D0+8*m+2*e}, 16, v{WR+28*m+4*k+e}"); a(f"v_and_b32 v{D0+8*m+2*e+1}, 0xffff0000, v{WR+28*m+4*k+e}")
        if k:
            for i in range(16): a(f"v_add_f32 v{C+i}, v{C+i}, v{160+i}")
    for i in range(16): a(f"v_add_f32_dpp v{C+i}, v{C+i}, v{C+i} row_ror:8 row_mask:0xf bank_mask:0xf")
    for i in range(16): a(f"v_mov_b32 v{160+i}, v{C+i}")
    for i in range(16): a(f"v_permlane16_swap_b32 v{C+i}, v{160+i}")
    for i in range(16): a(f"v_add_f32 v{C+i}, v{C+i}, v{160+i}")
    for i in range(16): a(f"v_mov_b32 v{160+i}, v{C+i}")
    for i in range(16): a(f"v_permlane32_swap_b32 v{C+i}, v{160+i}")
    for i in range(16): a(f"v_add_f32 v{C+i}, v{C+i}, v{160+i}")
    a(f"v_lshlrev_b32 v14, 5, v{LANE}"); a("s_lshl_b32 s3, s66, 9"); a("v_add_u32 v14, s3, v14")
    a("s_mov_b64 exec, 0xff")
    for m in range(2):
        a(f"ds_write_b128 v14, v[{C+8*m}:{C+8*m+3}] offset:{256*m}"); a(f"ds_write_b128 v14, v[{C+8*m+4}:{C+8*m+7}] offset:{256*m+16}")
    a("s_mov_b64 exec, -1")
    a("s_waitcnt lgkmcnt(0)")
    a("s_barrier")
    a("s_cmp_ge_u32 s66, 2"); a("s_cbranch_scc1 L_SP6")
    a(f"v_lshlrev_b32 v14, 2, v{LANE}"); a("s_lshl_b32 s3, s66, 8"); a("v_add_u32 v15, s3, v14")
    for w in range(8): a(f"ds_read_b32 v{C+w}, v15 offset:{512*w}")
    a("s_waitcnt lgkmcnt(0)")
    for w in range(1,8): a(f"v_add_f32 v{C}, v{C}, v{C+w}")
    a("s_mul_i32 s3, s66, 7168"); a("s_lshl_b32 s4, s64, 8"); a("s_add_u32 s3, s3, s4"); a(f"s_add_u32 s3, s3, {CS_OFF}")
    a(f"buffer_store_dword v{C}, v14, s[60:63], s3 offen sc0 sc1")
    a.label("L_SP6")
    stamp(a,19)
    a("s_waitcnt vmcnt(0)")
    stamp(a,20)
    a("s_barrier")
    a("s_cmp_lg_u32 s66, 0"); a("s_cbranch_scc1 L_SP7")
    a("v_mov_b32 v4, 1"); a("s_lshl_b32 s3, s64, 2"); a("v_mov_b32 v5, s3")
    a("s_mov_b64 exec, 1")
    a("buffer_store_dword v4, v5, s[12:15], 0 offen sc0 sc1")
    a("s_mov_b64 exec, -1")
    a.label("L_SP7")
    stamp(a,13); stamp_rt(a,14); stamp_flush(a)
    a.label("L_END"); a("s_endpgm")
    return a

def main(out):
    a=gen()
    hdr=open("cdna_kernels/"+NAME+".s.ref").read().split("; Override launch")[0]
    s=hdr+"; @launch grid=(256,1,1) block=(512,1,1) lds=163840\n"
    s+='.amdgcn_target "amdgcn-amd-amdhsa--gfx950"\n.text\n'+a.text()
    s+=f""".section .rodata,"a"
.p2align 6
.amdhsa_kernel {KN}
  .amdhsa_next_free_vgpr 256
  .amdhsa_next_free_sgpr 102
  .amdhsa_accum_offset 256
  .amdhsa_group_segment_fixed_size 0
  .amdhsa_kernarg_size 128
  .amdhsa_user_sgpr_count 2
  .amdhsa_user_sgpr_kernarg_segment_ptr 1
  .amdhsa_system_sgpr_workgroup_id_x 1
  .amdhsa_float_denorm_mode_32 3
.end_amdhsa_kernel
"""
    open(out,"w").write(s)
    print("maxv",a.maxv,"bytes",len(s))
if __name__=="__main__":
    main(sys.argv[1] if len(sys.argv)>1 else "fused.s")
```

```python
import sys, os, struct
from asmlib import *

NAME="recurrent_scan__ssm_conv_s5__swiglu_ffn__prompt"
KN=NAME+"_kernel"
A_OFF=2<<20; H_OFF=10<<20
T_OFF=14<<20; FL_OFF=T_OFF+114688
STM_OFF=(14<<20)+(256<<10); STR_OFF=STM_OFF+8192; STD_OFF=STM_OFF+16384; CS_OFF=STM_OFF+32768
WS_SIZE=16<<20
LOG2E=0x3fb8aa3b; NLOG2E=0xbfb8aa3b; INV2PI=0x3e22f983; INV448=0x3b124925
STAMP=bool(os.environ.get("STAMP")); ST_OFF=15<<20
DSTAMP=bool(os.environ.get("DSTAMP"))
DMAP={0:1,2:2,3:3,8:4,9:5,11:6,13:7,32+13:8,32+11:9,10:10}
DFR=int(os.environ.get("DFR","8"))
FB=int(os.environ.get("FB","8"))
NE=8
XS=0; BS=49152
WR_=98304
EARLY=lambda w: w*16384
LATE=[98304+6144*i for i in range(4)]+[98304+24576, 98304+24576+8192]
TRS=139264; ESCR=TRS; GSCR=TRS+18432; FOLD=GSCR+256

def srd(a, d, lo, hi, size):
    a(f"s_mov_b32 s{d}, s{lo}"); a(f"s_and_b32 s{d+1}, s{hi}, 0xffff"); a(f"s_mov_b32 s{d+2}, {size}"); a(f"s_mov_b32 s{d+3}, 0x20000")
def stamp(a,i,rt=False):
    if DSTAMP and i in DMAP:
        a(f"s_memrealtime s[100:101]"); a("s_waitcnt lgkmcnt(0)"); a.lg=[]
        a(f"v_writelane_b32 v255, s100, {DMAP[i]}")
        if i==0:
            a("s_not_b32 s100, s100"); a(f"v_writelane_b32 v255, s100, 0")
    if STAMP:
        a(f"s_mem{'real' if rt else ''}time s[100:101]"); a("s_waitcnt lgkmcnt(0)"); a.lg=[]
        a(f"v_writelane_b32 v255, s100, {i}")
def stamp_flush(a,spare=False):
    if DSTAMP:
        a("v_lshlrev_b32 v254, 2, v1")
        if spare: a("s_mov_b64 exec, 0x80"); a("v_add_u32 v254, 16, v254")
        else: a("s_mov_b64 exec, 0x7ff")
        a(f"buffer_atomic_umax v255, v254, s[12:15], 0 offen sc1")
        a("s_mov_b64 exec, -1")
    if not STAMP: return
    a(f"s_lshl_b32 s3, s2, 3"); a(f"s_add_u32 s3, s3, s66"); a("s_lshl_b32 s3, s3, 8"); a(f"s_add_u32 s3, s3, {ST_OFF}")
    a("v_lshlrev_b32 v254, 2, v1")
    a(f"buffer_store_dword v255, v254, s[60:63], s3 offen")
def tau_inv(a, dst, t, tmp):
    a(f"v_and_b32 v{dst}, 3, v{t}"); a(f"v_bfe_u32 v{tmp}, v{t}, 2, 2"); a(f"v_lshl_or_b32 v{dst}, v{tmp}, 3, v{dst}")
    a(f"v_bfe_u32 v{tmp}, v{t}, 4, 1"); a(f"v_lshl_or_b32 v{dst}, v{tmp}, 2, v{dst}")
def tau(a, dst, r, tmp):
    a(f"v_and_b32 v{dst}, 3, v{r}"); a(f"v_bfe_u32 v{tmp}, v{r}, 3, 2"); a(f"v_lshl_or_b32 v{dst}, v{tmp}, 2, v{dst}")
    a(f"v_bfe_u32 v{tmp}, v{r}, 2, 1"); a(f"v_lshl_or_b32 v{dst}, v{tmp}, 4, v{dst}")
def allreduce32_multi(a, vs, ts):
    for pat in ("quad_perm:[1,0,3,2]","quad_perm:[2,3,0,1]","row_half_mirror","row_mirror"):
        for v in vs: a(f"v_add_f32_dpp v{v}, v{v}, v{v} {pat} row_mask:0xf bank_mask:0xf")
    for v,t in zip(vs,ts): a(f"v_mov_b32 v{t}, v{v}")
    for v,t in zip(vs,ts): a(f"v_permlane16_swap_b32 v{v}, v{t}")
    for v,t in zip(vs,ts): a(f"v_add_f32 v{v}, v{v}, v{t}")
def w128_dma_off(a, dst, t1, t2, stride):
    a(f"v_lshrrev_b32 v{dst}, 3, v1"); a(f"v_bfe_u32 v{t1}, v1, 4, 1"); a(f"v_lshlrev_b32 v{t1}, 2, v{t1}")
    a(f"v_and_b32 v{t2}, 7, v1"); a(f"v_xor_b32 v{t1}, v{t1}, v{t2}")
    a(f"v_mul_u32_u24 v{dst}, {stride}, v{dst}"); a(f"v_lshl_add_u32 v{dst}, v{t1}, 4, v{dst}")
def w128_rd_off(a, dst, t1, hmul):
    a(f"v_bfe_u32 v{t1}, v1, 2, 2"); a(f"v_lshrrev_b32 v{dst}, 5, v1"); a(f"v_lshl_add_u32 v{dst}, v{dst}, {hmul}, v{t1}")
    a(f"v_lshlrev_b32 v{dst}, 7, v{dst}"); a(f"v_bfe_u32 v{t1}, v1, 3, 1"); a(f"v_lshl_add_u32 v{dst}, v{t1}, 6, v{dst}")
    a(f"v_bfe_u32 v{t1}, v1, 4, 1"); a(f"v_lshl_add_u32 v{dst}, v{t1}, 5, v{dst}")
    a(f"v_and_b32 v{t1}, 3, v1"); a(f"v_lshl_add_u32 v{dst}, v{t1}, 3, v{dst}")
def row128_rd_off(a, dst, t1, t2):
    a(f"v_and_b32 v{t1}, 31, v1"); a(f"v_lshrrev_b32 v{t2}, 5, v1"); a(f"v_bfe_u32 v{dst}, v{t1}, 1, 3")
    a(f"v_xor_b32 v{dst}, v{dst}, v{t2}"); a(f"v_lshlrev_b32 v{dst}, 4, v{dst}"); a(f"v_lshl_add_u32 v{dst}, v{t1}, 7, v{dst}")

class Fill:
    def __init__(s,a): s.a=a; s.q=[]
    def __call__(s,x): s.q.append(x)
    def do(s,f): s.q.append(f)
    def after(s,sb): s.q.append(("AFTER",sb))
    def run(s,n,cur=99):
        while n>0 and s.q:
            if isinstance(s.q[0],tuple):
                if cur>=s.q[0][1]: s.q.pop(0); continue
                return
            x=s.q.pop(0)
            if isinstance(x,str): s.a(x); n-=1
            else:
                r=x(); n-= (r if isinstance(r,int) else 1)
    def flush(s): s.run(10**9)

def gen():
    a=Asm()
    a.raw(f".globl {KN}\n.p2align 8\n.type {KN},@function\n{KN}:")
    a("s_cmp_ge_u32 s2, 256"); a("s_cbranch_scc1 L_END")
    a("s_load_dwordx16 s[16:31], s[0:1], 0"); a("s_load_dwordx16 s[32:47], s[0:1], 64")
    if STAMP or DSTAMP: a("v_mov_b32 v255, 0")
    stamp(a,0,True); stamp(a,1)
    a("v_lshrrev_b32 v2, 6, v0"); a("v_and_b32 v1, 63, v0"); a("v_readfirstlane_b32 s66, v2")
    a("s_cmp_ge_u32 s2, 224"); a("s_cbranch_scc1 L_SPARE")
    a("s_and_b32 s3, s2, 7"); a("s_lshr_b32 s4, s2, 3")
    a("s_lshr_b32 s5, s3, 1"); a("s_lshl_b32 s5, s5, 2"); a("s_and_b32 s87, s4, 3"); a("s_add_u32 s64, s5, s87")
    a("s_and_b32 s5, s3, 1"); a("s_mul_i32 s5, s5, 7"); a("s_lshr_b32 s89, s4, 2"); a("s_add_u32 s65, s5, s89")
    a("s_lshl_b32 s5, s3, 2"); a("s_add_u32 s88, s5, s87")
    a("s_and_b32 s67, s66, 3"); a("s_lshr_b32 s68, s66, 2")
    vX=2; vB=6; vW=10; oX=11; oB=13; oW=14; vseg=15
    lr,li,cr,ci,l8r,l8i,pwr,pwi,s8r,s8i,scr,sci=range(16,28)
    t0,t1,t2,t3=28,29,30,31
    FR=[32,44]; aGA=56; aUA=72; aS=88; aGB=104; aUB=120; XF=136
    a(f"v_lshrrev_b32 v{t0}, 3, v1"); a("s_lshl_b32 s3, s66, 4")
    for e in range(2):
        a(f"v_add_u32 v{t1}, s3, v{t0}")
        if e: a(f"v_add_u32 v{t1}, 8, v{t1}")
        a(f"v_and_b32 v{t2}, 31, v{t1}"); tau(a,t3,t2,248)
        a(f"v_and_b32 v{t2}, 0x60, v{t1}"); a(f"v_or_b32 v{t3}, v{t3}, v{t2}"); a(f"v_mul_u32_u24 v{t3}, 896, v{t3}")
        a(f"v_bfe_u32 v{t1}, v{t1}, 1, 3"); a(f"v_and_b32 v{t2}, 7, v1"); a(f"v_xor_b32 v{t1}, v{t1}, v{t2}")
        a(f"v_lshl_add_u32 v{oX+e}, v{t1}, 4, v{t3}")
    a("s_lshl_b32 s3, s66, 3"); a(f"v_add_u32 v{t1}, s3, v{t0}"); a(f"v_bfe_u32 v{t1}, v{t1}, 1, 3"); a(f"v_xor_b32 v{t1}, v{t1}, v{t2}")
    a("s_lshl_b32 s3, s65, 5"); a("s_lshl_b32 s5, s68, 4"); a("s_add_u32 s3, s3, s5"); a("s_and_b32 s5, s66, 1"); a("s_lshl_b32 s5, s5, 3"); a("s_add_u32 s3, s3, s5")
    a(f"v_add_u32 v{t0}, s3, v{t0}"); a(f"v_mul_u32_u24 v{t0}, 896, v{t0}"); a(f"v_lshl_add_u32 v{oB}, v{t1}, 4, v{t0}")
    w128_dma_off(a,oW,t0,t1,3584)
    a(f"s_mul_i32 s3, s67, {8*3584}"); a("s_lshl_b32 s4, s65, 8"); a("s_add_u32 s3, s3, s4"); a(f"v_add_u32 v{oW}, s3, v{oW}")
    a(f"s_mul_i32 s73, s64, {128*896}"); a("s_lshl_b32 s74, s66, 11"); a("s_lshl_b32 s75, s66, 10")
    a("s_waitcnt lgkmcnt(0)")
    srd(a,8,16,17,2048*896)
    a("s_cmp_eq_u32 s68, 0"); a("s_cselect_b32 s48, s36, s38"); a("s_cselect_b32 s49, s37, s39")
    a("s_and_b32 s49, s49, 0xffff"); a(f"s_mov_b32 s50, {448*3584}"); a("s_mov_b32 s51, 0x20000")
    a("s_and_b32 s3, s66, 2"); a("s_cmp_eq_u32 s3, 0"); a("s_cselect_b32 s56, s22, s24"); a("s_cselect_b32 s57, s23, s25")
    a("s_and_b32 s57, s57, 0xffff"); a(f"s_mov_b32 s58, {448*896}"); a("s_mov_b32 s59, 0x20000")
    def dma_xb(J):
        slot=J%3
        a(f"s_movk_i32 s76, {J*128}"); a(f"s_add_u32 m0, s74, {XS+slot*16384}"); a(f"s_add_u32 s77, s76, s73")
        a(f"buffer_load_dwordx4 v{oX}, s[8:11], s77 offen lds"); a.vm_issue(("x",J))
        a(f"s_add_u32 m0, s74, {XS+slot*16384+1024}")
        a(f"buffer_load_dwordx4 v{oX+1}, s[8:11], s77 offen lds"); a.vm_issue(("x",J))
        a(f"s_add_u32 m0, s75, {BS+slot*8192}")
        a(f"buffer_load_dwordx4 v{oB}, s[56:59], s76 offen lds"); a.vm_issue(("x",J))
    def dma_w(i):
        a(f"s_mov_b32 s77, {(i%14)*32*3584+(i//14)*128}"); a(f"s_add_u32 m0, s75, {WR_+(i%5)*8192}")
        a(f"buffer_load_dwordx4 v{oW}, s[48:51], s77 offen lds"); a.vm_issue(("w",i))
    stamp(a,16)
    dma_xb(0); dma_w(0); dma_w(1); dma_xb(1); dma_w(2); dma_w(3)
    stamp(a,17)
    srd(a,60,46,47,WS_SIZE); srd(a,12,44,45,256)
    for r in (249,250,251,252,253,124): a(f"v_mov_b32 v{r}, 0")
    row128_rd_off(a,t2,t0,t1)
    a("s_lshl_b32 s3, s67, 12"); a("s_lshl_b32 s5, s68, 12"); a(f"s_add_u32 s5, s5, {BS}")
    for ks in range(4):
        a(f"v_xor_b32 v{t3}, {ks*32}, v{t2}"); a(f"v_add_u32 v{vX+ks}, s3, v{t3}"); a(f"v_add_u32 v{vB+ks}, s5, v{t3}")
    w128_rd_off(a,vW,t0,3)
    a("s_lshl_b32 s3, s68, 6"); a(f"v_xor_b32 v{vW}, s3, v{vW}"); a(f"v_add_u32 v{vW}, {WR_}, v{vW}")
    fa=Fill(a)
    PL=104
    def param_loads():
        a(f"v_and_b32 v{t0}, 15, v1"); a("s_lshl_b32 s3, s65, 5"); a("s_lshl_b32 s4, s68, 4"); a("s_add_u32 s4, s3, s4")
        a(f"v_add_u32 v{t0}, s4, v{t0}"); a(f"v_lshlrev_b32 v{t0}, 1, v{t0}")
        a(f"v_and_b32 v{t1}, 31, v1"); a(f"v_add_u32 v{t1}, s3, v{t1}"); a(f"v_lshlrev_b32 v{t1}, 1, v{t1}")
        for k,p in enumerate((18,20,30)):
            a(f"global_load_ushort v{PL+k}, v{t0}, s[{p}:{p+1}]"); a.vm_issue("p")
            a(f"global_load_ushort v{PL+3+k}, v{t1}, s[{p}:{p+1}]"); a.vm_issue("p")
    f=fa
    for k in range(6): f(f"v_lshlrev_b32 v{PL+k}, 16, v{PL+k}")
    def prep(b,a2,b2):
        f(f"v_mul_f32 v{b+2}, {LOG2E}, v{b+2}"); f(f"v_exp_f32 v{b+2}, v{b+2}"); f(f"v_cvt_pk_bf16_f32 v{b+2}, 0, v{b+2}")
        f(f"v_mul_f32 v{a2}, v{b+2}, v{b}"); f(f"v_mul_f32 v{a2}, {LOG2E}, v{a2}")
        f(f"v_mul_f32 v{b2}, v{b+2}, v{b+1}"); f(f"v_mul_f32 v{b2}, {INV2PI}, v{b2}")
    prep(PL,PL+6,PL+7); prep(PL+3,PL+8,PL+9)
    q0,q1,q2,q3=PL+10,PL+11,PL+12,PL+13
    def cpow(dr,di,n,a2,b2):
        f(f"v_mul_f32 v{q0}, {n}, v{a2}"); f(f"v_mul_f32 v{q1}, {n}, v{b2}")
        f(f"v_exp_f32 v{q0}, v{q0}"); f(f"v_rndne_f32 v{q2}, v{q1}"); f(f"v_sub_f32 v{q1}, v{q1}, v{q2}")
        f(f"v_cos_f32 v{dr}, v{q1}"); f(f"v_sin_f32 v{di}, v{q1}")
        f(f"v_mul_f32 v{dr}, v{dr}, v{q0}"); f(f"v_mul_f32 v{di}, v{di}, v{q0}")
    cpow(lr,li,"1.0",PL+6,PL+7); cpow(l8r,l8i,"0x41000000",PL+6,PL+7)
    cpow(s8r,s8i,"0x41000000",PL+8,PL+9); cpow(scr,sci,"0x43000000",PL+8,PL+9)
    f(f"v_lshrrev_b32 v{vseg}, 4, v1"); f(f"v_lshl_add_u32 v{vseg}, s67, 2, v{vseg}")
    f(f"v_lshlrev_b32 v{q3}, 3, v{vseg}"); f(f"v_cvt_f32_u32 v{q3}, v{q3}")
    cpow(pwr,pwi,f"v{q3}",PL+6,PL+7)
    f(f"v_add_f32 v{q0}, -1.0, v{lr}")
    f(f"v_mul_f32 v{q1}, v{PL}, v{PL}"); f(f"v_fmac_f32 v{q1}, v{PL+1}, v{PL+1}"); f(f"v_rcp_f32 v{q1}, v{q1}"); f(f"v_add_f32 v{q1}, v{q1}, v{q1}")
    f(f"v_mul_f32 v{q2}, v{q0}, v{PL}"); f(f"v_fmac_f32 v{q2}, v{li}, v{PL+1}"); f(f"v_mul_f32 v{cr}, v{q2}, v{q1}")
    f(f"v_mul_f32 v{q2}, v{li}, v{PL}"); f(f"v_fma_f32 v{q2}, -v{q0}, v{PL+1}, v{q2}"); f(f"v_mul_f32 v{ci}, v{q2}, v{q1}")
    def fold_dma():
        a(f"v_lshlrev_b32 v{t0}, 4, v1")
        a("s_lshl_b32 s3, s65, 9"); a(f"s_add_u32 s3, s3, {CS_OFF}"); a(f"s_mov_b32 s4, {FOLD}")
        a("s_cmp_eq_u32 s66, 1"); a(f"s_cselect_b32 s5, {1792*4}, 0"); a(f"s_cselect_b32 s4, {FOLD+512}, s4"); a("s_add_u32 s3, s3, s5")
        a("s_lshl_b32 s5, s64, 9"); a(f"s_add_u32 s5, s5, {STM_OFF}")
        a("s_cmp_eq_u32 s66, 3"); a("s_cselect_b32 s3, s5, s3"); a(f"s_cselect_b32 s4, {FOLD+1280}, s4")
        a(f"s_add_u32 s5, s5, 8192")
        a("s_cmp_ge_u32 s66, 4"); a("s_cselect_b32 s3, s5, s3"); a(f"s_cselect_b32 s4, {FOLD+1792}, s4")
        a("s_mov_b64 exec, 0xffffffff")
        a("s_cmp_lg_u32 s66, 2"); a("s_cbranch_scc1 L_FD1")
        a("s_lshl_b32 s3, s65, 7"); a(f"s_add_u32 s3, s3, {CS_OFF+3584*4}"); a(f"s_mov_b32 s4, {FOLD+1024}")
        a(f"v_bfe_u32 v{t1}, v1, 3, 1"); a(f"v_mul_u32_u24 v{t1}, {1792-128}, v{t1}"); a(f"v_add_u32 v{t0}, v{t0}, v{t1}")
        a("s_mov_b64 exec, 0xffff")
        a.label("L_FD1")
        a("s_mov_b32 m0, s4")
        a(f"buffer_load_dwordx4 v{t0}, s[60:63], s3 offen sc1 lds"); a.vm_issue("f")
        a("s_mov_b64 exec, -1")
    oD=248; oD2=249; rA=[250,251,252,253]
    def slotF(s): return EARLY(0)+ (s%11)*2048 if (s%11)<8 else None
    def dmaF(s):
        k=s%11
        if k<8: a(f"s_add_u32 m0, s90, {k*2048}")
        else: a(f"s_add_u32 m0, s94, {(k-8)*2048}")
        a(f"s_add_u32 s77, s91, {s*16*896}"); a(f"s_add_u32 s78, s91, {s*16*896+6144}")
        a(f"buffer_load_dwordx4 v{oD}, s[52:55], s77 offen lds")
        a(f"buffer_load_dwordx4 v{oD}, s[52:55], s78 offen offset:1024 lds")
    def dmaS(cs,pair):
        for e in (2*pair,2*pair+1):
            if cs%3<2: a(f"s_add_u32 m0, s90, {(cs%3)*8192+(e//4)*4096}")
            else: a(f"s_add_u32 m0, s94, {(e//4)*4096}")
            a(f"s_mov_b32 s77, {cs*128+e*7168-(e%4)*1024}")
            o = oD if e%2==0 else oD2
            a(f"buffer_load_dwordx4 v{o}, s[52:55], s77 offen offset:{(e%4)*1024} lds")
    def p2_setup():
        a("s_cmp_eq_u32 s66, 4"); a("s_cselect_b32 s52, s26, s40"); a("s_cselect_b32 s53, s27, s41")
        a("s_cmp_eq_u32 s66, 5"); a("s_cselect_b32 s52, s28, s52"); a("s_cselect_b32 s53, s29, s53")
        a("s_and_b32 s53, s53, 0xffff"); a("s_and_b32 s3, s66, 6"); a("s_cmp_eq_u32 s3, 4"); a(f"s_mov_b32 s54, {1792*896}"); a(f"s_cselect_b32 s54, {448*896}, s54"); a("s_mov_b32 s55, 0x20000")
        a("s_lshl_b32 s90, s66, 14")
        a(f"s_mul_i32 s94, s66, 6144"); a(f"s_add_u32 s94, s94, {LATE[0]}"); a("s_cmp_eq_u32 s66, 5"); a(f"s_cselect_b32 s94, {LATE[5]}, s94")
        a(f"s_mul_i32 s91, s66, {448*896}")
        a("s_cmp_ge_u32 s66, 6"); a("s_cbranch_scc1 L_PS6")
        a("s_cmp_ge_u32 s66, 4"); a("s_cbranch_scc1 L_PS4")
        w128_dma_off(a,oD,t0,t1,896); a("s_lshl_b32 s3, s89, 7"); a(f"v_add_u32 v{oD}, s3, v{oD}")
        w128_rd_off(a,t2,t0,2)
        a(f"v_add_u32 v{rA[0]}, s90, v{t2}"); a(f"v_add_u32 v{rA[2]}, s94, v{t2}"); a(f"v_xor_b32 v{t2}, 64, v{t2}")
        a(f"v_add_u32 v{rA[1]}, s90, v{t2}"); a(f"v_add_u32 v{rA[3]}, s94, v{t2}")
        a("s_branch L_PS9")
        a.label("L_PS4")
        a(f"v_lshrrev_b32 v{t0}, 3, v1"); a("s_lshl_b32 s3, s89, 6"); a(f"v_add_u32 v{t0}, s3, v{t0}"); a(f"v_mul_u32_u24 v{t0}, 896, v{t0}")
        a(f"v_lshrrev_b32 v{t1}, 4, v1"); a(f"v_and_b32 v{t2}, 7, v1"); a(f"v_xor_b32 v{t1}, v{t1}, v{t2}")
        a(f"v_lshl_add_u32 v{oD}, v{t1}, 4, v{t0}"); a(f"v_xor_b32 v{t1}, 4, v{t1}"); a(f"v_lshl_add_u32 v{oD2}, v{t1}, 4, v{t0}")
        row128_rd_off(a,t2,t0,t1)
        for ks in range(4):
            a(f"v_xor_b32 v{t3}, {ks*32}, v{t2}"); a(f"v_add_u32 v{rA[ks]}, s90, v{t3}")
        a("s_branch L_PS9")
        a.label("L_PS6")
        a(f"v_lshrrev_b32 v{t0}, 4, v1"); a(f"v_mul_u32_u24 v{t0}, 448, v{t0}"); a(f"v_and_b32 v{t1}, 15, v1"); a(f"v_add_u32 v{t0}, v{t0}, v{t1}")
        a("s_lshl_b32 s3, s87, 4"); a(f"v_add_u32 v{t0}, s3, v{t0}"); a(f"v_mul_u32_u24 v{t0}, 896, v{t0}")
        a("s_lshl_b32 s3, s89, 7"); a(f"v_add_u32 v{oD}, s3, v{t0}")
        a.label("L_PS9")
    def early(k):
        lab=f"L_EA{k}"
        a("s_cmp_ge_u32 s66, 6"); a(f"s_cbranch_scc1 {lab}T")
        a("s_cmp_ge_u32 s66, 4"); a(f"s_cbranch_scc1 {lab}S")
        dmaF(k); a(f"s_branch {lab}")
        a.label(lab+"S"); dmaS(k//4,k%4); a(f"s_branch {lab}")
        a.label(lab+"T")
        for j in range(2):
            g=min(2+(2*k+j)//2 if False else 2+((2*k+j)%5),6)
            a(f"s_mov_b32 s77, {g*64*896}")
            a(f"buffer_load_dword v{oD2}, v{oD}, s[52:55], s77 offen")
        a.label(lab)
        a.vm_issue("e"); a.vm_issue("e")

    def readsA(s):
        F=FR[s&1]; i=s//2; J=s//4; ks=s%4; wo=(i%5)*8192+(s%2)*2048
        a(f"ds_read_b64_tr_b16 v[{F}:{F+1}], v{vW} offset:{wo}"); a.lg_issue(s)
        a(f"ds_read_b64_tr_b16 v[{F+2}:{F+3}], v{vW} offset:{wo+512}"); a.lg_issue(s)
        a(f"ds_read_b128 v[{XF+4*s}:{XF+4*s+3}], v{vX+ks} offset:{(J%3)*16384}"); a.lg_issue(s)
        a(f"ds_read_b64_tr_b16 v[{F+4}:{F+5}], v{vW} offset:{wo+4096}"); a.lg_issue(s)
        a(f"ds_read_b64_tr_b16 v[{F+6}:{F+7}], v{vW} offset:{wo+4096+512}"); a.lg_issue(s)
        a(f"ds_read_b128 v[{F+8}:{F+11}], v{vB+ks} offset:{(J%3)*8192}"); a.lg_issue(s)
    def readsB(s):
        F=FR[s&1]; i=s//2; wo=(i%5)*8192+(s%2)*2048
        for k,o in enumerate((0,512,4096,4608)):
            a(f"ds_read_b64_tr_b16 v[{F+2*k}:{F+2*k+1}], v{vW} offset:{wo+o}"); a.lg_issue(s)
    def mf(d,A,B,first):
        c = "0" if first else f"v[{d}:{d+15}]"
        a(f"v_mfma_f32_32x32x16_bf16 v[{d}:{d+15}], v[{A}:{A+3}], v[{B}:{B+3}], {c}")

    fb=Fill(a); f=fb
    L=lambda ins,tag: (lambda: (a(ins), a.lg_issue(tag), 1)[2])
    Wt=lambda tag: (lambda: (a.lg_wait(tag), 0)[1])
    T8=[2,3,4,5,6,7,8,9]
    vFo=0; vM=40; vR=41; vRl=42; vCsB=43; vE=52; vE32=53; vT=54; oF=55; c0r,c0i=t2,t3
    FO=FOLD-TRS; EO=ESCR-TRS; GO=GSCR-TRS
    f(f"v_lshrrev_b32 v{vFo}, 5, v1"); f(f"v_lshlrev_b32 v{vFo}, 4, v{vFo}"); f(f"v_add_u32 v{vFo}, {TRS}, v{vFo}")
    f(f"v_lshl_add_u32 v{t0}, s67, 7, v{vFo}")
    f(f"v_lshl_add_u32 v{vFo}, s68, 7, v{vFo}")
    f(f"v_and_b32 v{t1}, 31, v1"); f(f"v_lshlrev_b32 v{vE32}, 3, v{t1}"); f(f"v_add_u32 v{vE32}, {TRS}, v{vE32}"); f(f"v_lshlrev_b32 v{vT}, 4, v{t1}")
    f(f"v_lshlrev_b32 v{t1}, 2, v{t1}"); f(f"v_lshl_add_u32 v{t1}, s67, 7, v{t1}"); f(f"v_add_u32 v{t1}, {TRS}, v{t1}")
    f.do(L(f"ds_read_b32 v{vM}, v{t1} offset:{FO+1280}","m")); f.do(L(f"ds_read_b32 v{vR}, v{t1} offset:{FO+1792}","m"))
    f(f"v_and_b32 v{t1}, 15, v1"); f(f"v_lshlrev_b32 v{vE}, 3, v{t1}"); f(f"v_lshl_add_u32 v{vE}, s68, 7, v{vE}"); f(f"v_add_u32 v{vE}, {TRS}, v{vE}")
    f(f"v_bfe_u32 v{t2}, v1, 4, 1"); f(f"v_lshl_add_u32 v{t1}, v{t2}, 5, v{t1}"); f(f"v_lshl_add_u32 v{t1}, s68, 4, v{t1}"); f(f"v_lshlrev_b32 v{t1}, 2, v{t1}"); f(f"v_add_u32 v{t1}, {TRS}, v{t1}")
    f.do(L(f"ds_read_b32 v{vCsB}, v{t1} offset:{FO+1024}","m"))
    f(f"v_lshlrev_b32 v{oF}, 4, v1")
    for g in range(4):
        f.do(L(f"ds_read_b128 v[{T8[0]}:{T8[3]}], v{t0} offset:{FO+1280+32*g}",("s",g)))
        f.do(L(f"ds_read_b128 v[{T8[4]}:{T8[7]}], v{t0} offset:{FO+1792+32*g}",("s",g)))
        if g==0: f.do(Wt("m")); f(f"v_mul_f32 v{vRl}, {NLOG2E}, v{vR}")
        f.do(Wt(("s",g)))
        for k in range(4): f(f"v_fma_f32 v{aS+4*g+k}, -v{T8[k]}, v{vCsB}, v{aS+4*g+k}")
        for k in range(4): f(f"v_mul_f32 v{aS+4*g+k}, v{aS+4*g+k}, v{T8[4+k]}")
    re=[aS+j for j in range(8)]; im=[aS+8+j for j in range(8)]
    for j in range(8): f(f"v_permlane16_swap_b32 v{re[j]}, v{im[j]}")
    for j0 in (0,4):
        for j in range(j0,j0+4): f(f"v_mul_f32 v{T8[j-j0]}, v{ci}, v{im[j]}"); f(f"v_mul_f32 v{T8[4+j-j0]}, v{ci}, v{re[j]}")
        for j in range(j0,j0+4): f(f"v_fma_f32 v{re[j]}, v{cr}, v{re[j]}, -v{T8[j-j0]}"); f(f"v_fma_f32 v{im[j]}, v{cr}, v{im[j]}, v{T8[4+j-j0]}")
    bur,bui=re,im
    hA=(T8[0],T8[1]); hB=(T8[2],T8[3]); cur=(bur[0],bui[0])
    f(f"v_lshl_add_u32 v{T8[4]}, v{vseg}, 8, v{vE}")
    for j in range(1,8):
        n = hA if j%2 else hB
        f(f"v_fma_f32 v{n[0]}, v{lr}, v{cur[0]}, v{bur[j]}"); f(f"v_fma_f32 v{n[1]}, v{lr}, v{cur[1]}, v{bui[j]}")
        f(f"v_fma_f32 v{n[0]}, -v{li}, v{cur[1]}, v{n[0]}"); f(f"v_fmac_f32 v{n[1]}, v{li}, v{cur[0]}")
        cur=n
    f.do(L(f"ds_write_b64 v{T8[4]}, v[{hA[0]}:{hA[1]}] offset:{EO}","ew")); f.do(Wt("ew"))
    seg1=fb;
    fc=Fill(a); f=fc
    E=XF
    def tpub():
        a("s_cmp_lg_u32 s66, 6"); a("s_cbranch_scc1 L_NOPUB")
        sv=list(a.lg)
        for sp in range(16): a(f"ds_read_b64 v[{E+2*sp}:{E+2*sp+1}], v{vE32} offset:{EO+sp*256}")
        a("s_waitcnt lgkmcnt(0)")
        cur=(E,E+1)
        for sp in range(1,16):
            n=(E+2*sp,E+2*sp+1)
            a(f"v_fmac_f32 v{n[0]}, v{s8r}, v{cur[0]}"); a(f"v_fmac_f32 v{n[1]}, v{s8r}, v{cur[1]}")
            a(f"v_fma_f32 v{n[0]}, -v{s8i}, v{cur[1]}, v{n[0]}"); a(f"v_fmac_f32 v{n[1]}, v{s8i}, v{cur[0]}")
            cur=n
        a(f"v_mov_b32 v{E}, v{cur[0]}"); a(f"v_mov_b32 v{E+1}, 1"); a(f"v_mov_b32 v{E+2}, v{cur[1]}"); a(f"v_mov_b32 v{E+3}, 1")
        a("s_lshl_b32 s3, s64, 9"); a("s_add_u32 s3, s3, s79")
        a("s_mov_b64 exec, 0xffffffff")
        a(f"buffer_store_dwordx4 v[{E}:{E+3}], v{vT}, s[60:63], s3 offen sc0 sc1")
        a("s_mov_b64 exec, -1"); a.nop(2)
        a.label("L_NOPUB"); a.lg=sv
        return 2
    f.do(tpub)
    for sp in range(15): f.do(L(f"ds_read_b64 v[{E+2*sp}:{E+2*sp+1}], v{vE} offset:{EO+sp*256}",("e",sp)))
    f(f"v_mov_b32 v{c0r}, 0"); f(f"v_mov_b32 v{c0i}, 0")
    f.do(Wt(("e",0))); cur=(E,E+1)
    pre=[]
    for sp in range(1,16):
        blk=[f"v_cmp_eq_u32 vcc, {sp}, v{vseg}"]
        if sp<15:
            n=(E+2*sp,E+2*sp+1)
            blk+=[Wt(("e",sp)), f"v_fmac_f32 v{n[0]}, v{l8r}, v{cur[0]}", f"v_fmac_f32 v{n[1]}, v{l8r}, v{cur[1]}"]
        blk+=[f"v_cndmask_b32 v{c0r}, v{c0r}, v{cur[0]}, vcc", f"v_cndmask_b32 v{c0i}, v{c0i}, v{cur[1]}, vcc"]
        if sp<15:
            blk+=[f"v_fma_f32 v{n[0]}, -v{l8i}, v{cur[1]}, v{n[0]}", f"v_fmac_f32 v{n[1]}, v{l8i}, v{cur[0]}"]; cur=n
        pre.append(blk)
    def ffn_prog(f, aG, aU, P, X, CS, pas, inter):
        def rd(g):
            cg=CS[g%2]
            f.do(L(f"ds_read_b128 v[{cg}:{cg+3}], v{vFo} offset:{FO+256*pas+32*g}",("c",pas,g)))
            f.do(L(f"ds_read_b128 v[{cg+4}:{cg+7}], v{vFo} offset:{FO+512+256*pas+32*g}",("c",pas,g)))
        rd(0); rd(1)
        for g in range(4):
            cg=CS[g%2]; idx=range(4*g,4*g+4)
            f.do(Wt(("c",pas,g)))
            for k,i in enumerate(idx): f(f"v_fma_f32 v{aG+i}, -v{vM}, v{cg+k}, v{aG+i}")
            for k,i in enumerate(idx): f(f"v_fma_f32 v{aU+i}, -v{vM}, v{cg+4+k}, v{aU+i}")
            if g<2: rd(g+2)
            for k,i in enumerate(idx): f(f"v_mul_f32 v{X[k]}, v{vRl}, v{aG+i}")
            for k,i in enumerate(idx): f(f"v_exp_f32 v{X[k]}, v{X[k]}")
            for i in idx: f(f"v_mul_f32 v{aU+i}, v{aU+i}, v{aG+i}")
            for k,i in enumerate(idx): f(f"v_add_f32 v{X[k]}, 1.0, v{X[k]}")
            for k,i in enumerate(idx): f(f"v_rcp_f32 v{X[k]}, v{X[k]}")
            for _ in range(4):
                if inter:
                    for x in inter.pop(0): (f(x) if isinstance(x,str) else f.do(x))
            for k,i in enumerate(idx): f(f"v_mul_f32 v{aU+i}, v{aU+i}, v{X[k]}")
            for k in range(2): f(f"v_cvt_pk_bf16_f32 v{P+2*g+k}, v{aU+4*g+2*k}, v{aU+4*g+2*k+1}")
    def a_store(P,pas):
        def go():
            a(f"s_lshl_b32 s3, s64, 2"); a(f"s_add_u32 s3, s3, s67"); a("s_mul_i32 s3, s3, 112")
            a("s_lshl_b32 s4, s65, 2"); a("s_add_u32 s4, s4, s68"); a("s_lshl_b32 s4, s4, 1")
            a("s_add_u32 s3, s3, s4"); a("s_lshl_b32 s3, s3, 10"); a(f"s_add_u32 s3, s3, {A_OFF+pas*4096}")
            a(f"buffer_store_dwordx4 v[{P}:{P+3}], v{oF}, s[60:63], s3 offen sc0 sc1"); a.vm_issue("st")
            a(f"buffer_store_dwordx4 v[{P+4}:{P+7}], v{oF}, s[60:63], s3 offen offset:1024 sc0 sc1"); a.vm_issue("st")
            return 4
        return go
    for blk in pre:
        for x in blk: (fc(x) if isinstance(x,str) else fc.do(x))
    fc.after(12)
    ffn_prog(fc, aGA, aUA, 180, [176,177,178,179], [2,168], 0, None)
    fc.do(a_store(180,0))
    TBL=[136+4*j for j in range(8)]+[188+4*j for j in range(7)]
    def poll_loads():
        for j in range(15):
            if j%8==0: a(f"s_add_u32 s3, s79, {j*512}")
            a(f"buffer_load_dwordx4 v[{TBL[j]}:{TBL[j]+3}], v{vT}, s[60:63], s3 offen offset:{(j%8)*512} sc0 sc1")
    def poll_issue():
        a("s_cmp_lg_u32 s66, 7"); a("s_cbranch_scc1 L_NOP1"); a("s_cmp_eq_u32 s64, 0"); a("s_cbranch_scc1 L_NOP1")
        poll_loads(); a.label("L_NOP1")
    Gr,Gi=T8[0],T8[1]; G2=(T8[2],T8[3])
    def poll_check():
        a("s_cmp_lg_u32 s66, 7"); a("s_cbranch_scc1 L_NOPOLL")
        sv=list(a.lg)
        a(f"v_mov_b32 v{Gr}, 0"); a(f"v_mov_b32 v{Gi}, 0"); a("s_mov_b32 s93, 0")
        a("s_cmp_eq_u32 s64, 0"); a("s_cbranch_scc1 L_GDONE")
        a("s_branch L_POLL1")
        a.label("L_POLL"); poll_loads(); a.label("L_POLL1")
        a(f"v_mov_b32 v{Gr}, 0"); a(f"v_mov_b32 v{Gi}, 0"); a("s_mov_b64 s[4:5], -1"); a("s_waitcnt vmcnt(0)")
        for j in range(15):
            b=TBL[j]
            if j>0: a(f"s_cmp_le_u32 s64, {j}"); a("s_cbranch_scc1 L_LEND")
            a(f"v_and_b32 v{b+1}, v{b+1}, v{b+3}")
            a(f"v_fma_f32 v{G2[0]}, v{scr}, v{Gr}, v{b}"); a(f"v_fma_f32 v{G2[1]}, v{scr}, v{Gi}, v{b+2}")
            a(f"v_cmp_eq_u32 vcc, 1, v{b+1}")
            a(f"v_fma_f32 v{G2[0]}, -v{sci}, v{Gi}, v{G2[0]}"); a(f"v_fma_f32 v{Gi}, v{sci}, v{Gr}, v{G2[1]}")
            a(f"v_mov_b32 v{Gr}, v{G2[0]}"); a("s_and_b64 s[4:5], s[4:5], vcc")
        a.label("L_LEND")
        a("s_cmp_eq_u64 s[4:5], -1"); a("s_cbranch_scc1 L_GDONE")
        a("s_add_u32 s93, s93, 1"); a("s_cmp_lt_u32 s93, 0x40000"); a("s_cbranch_scc1 L_POLL")
        a.label("L_GDONE"); a.nop(2)
        a(f"ds_write_b64 v{vE32}, v[{Gr}:{Gi}] offset:{GO}"); a("s_waitcnt lgkmcnt(0)")
        a.label("L_NOPOLL"); a.lg=sv
    fd=Fill(a); f=fd
    f.do(L(f"ds_read_b64 v[{Gr}:{Gi}], v{vE} offset:{GO}","g"))
    w1=T8[4]; r1=T8[5]; x1=T8[6]; x2=T8[7]
    f(f"v_and_b32 v{w1}, 15, v1"); f(f"v_mul_u32_u24 v{w1}, 72, v{w1}"); f(f"v_bfe_u32 v{x1}, v1, 4, 1"); f(f"v_lshl_add_u32 v{w1}, v{x1}, 5, v{w1}")
    f(f"v_lshrrev_b32 v{x2}, 5, v1"); f(f"v_lshl_add_u32 v{w1}, v{x2}, 3, v{w1}"); f(f"v_add_u32 v{w1}, s95, v{w1}")
    f(f"v_bfe_u32 v{r1}, v1, 2, 2"); f(f"v_lshl_add_u32 v{r1}, v{x2}, 3, v{r1}"); f(f"v_mul_u32_u24 v{r1}, 72, v{r1}")
    f(f"v_lshl_add_u32 v{r1}, v{x1}, 5, v{r1}"); f(f"v_and_b32 v{x2}, 3, v1"); f(f"v_lshl_add_u32 v{r1}, v{x2}, 3, v{r1}"); f(f"v_add_u32 v{r1}, s95, v{r1}")
    f.do(Wt("g"))
    f(f"v_fmac_f32 v{c0r}, v{pwr}, v{Gr}"); f(f"v_fmac_f32 v{c0i}, v{pwr}, v{Gi}")
    f(f"v_fma_f32 v{c0r}, -v{pwi}, v{Gi}, v{c0r}"); f(f"v_fmac_f32 v{c0i}, v{pwi}, v{Gr}")
    cur=(c0r,c0i)
    for j in range(8):
        n=(bur[j],bui[j])
        f(f"v_fmac_f32 v{n[0]}, v{lr}, v{cur[0]}"); f(f"v_fmac_f32 v{n[1]}, v{lr}, v{cur[1]}")
        f(f"v_fma_f32 v{n[0]}, -v{li}, v{cur[1]}, v{n[0]}"); f(f"v_fmac_f32 v{n[1]}, v{li}, v{cur[0]}")
        cur=n
    PK=aGA
    for j in range(4):
        f(f"v_cvt_pk_bf16_f32 v{PK+j}, v{bur[2*j]}, v{bur[2*j+1]}"); f(f"v_cvt_pk_bf16_f32 v{PK+4+j}, -v{bui[2*j]}, -v{bui[2*j+1]}")
    for k,o in enumerate((0,16,16*72,16*72+16)): f.do(L(f"ds_write_b64 v{w1}, v[{PK+2*k}:{PK+2*k+1}] offset:{o}","tw"))
    f.do(Wt("tw"))
    for sidx in range(2):
        for t in range(2):
            f.do(L(f"ds_read_b64_tr_b16 v[{PK+8+4*sidx+2*t}:{PK+8+4*sidx+2*t+1}], v{r1} offset:{(16*sidx+4*t)*72}","tr"))
    def h_store():
        a("s_lshl_b32 s3, s64, 2"); a("s_add_u32 s3, s3, s67"); a("s_mul_i32 s3, s3, 56")
        a("s_lshl_b32 s4, s65, 1"); a("s_add_u32 s4, s4, s68"); a("s_add_u32 s3, s3, s4")
        a("s_lshl_b32 s3, s3, 10"); a(f"s_add_u32 s3, s3, {H_OFF}"); a(f"s_add_u32 s4, s3, {28*1024}")
        a.lg_wait("tr")
        a(f"buffer_store_dwordx4 v[{PK+8}:{PK+11}], v{oF}, s[60:63], s3 offen sc0 sc1"); a.vm_issue("st")
        a(f"buffer_store_dwordx4 v[{PK+12}:{PK+15}], v{oF}, s[60:63], s4 offen sc0 sc1"); a.vm_issue("st")
        return 4
    f.do(h_store)

    stamp(a,21)
    a.vm_wait([("x",0),("w",0)]); a("s_barrier")
    stamp(a,2)
    readsA(0)
    EB=17
    PI=23
    GB=25
    for s in range(56):
        F=FR[s&1]; i=s//2; A_=s<28; sb=s-28
        bar = (s%2==1 and i<27)
        a.lg_wait(s)
        if A_: mf(aGA,F,XF+4*s,s==0)
        else: mf(aGB,F,XF+4*sb,sb==0)
        if not A_:
            if i<EB or (i==EB and not bar): seg1.run(FB)
        if bar:
            need=[("w",i+1)]
            if i<13 and (i+1)%2==0: need.append(("x",(i+1)//2))
            if i==4: need.append("p")
            if i==13: need.append("f")
            a.vm_wait(need)
            if i==11:
                a("s_cmp_lg_u32 s66, 7"); a("s_cbranch_scc1 L_PCHK_OK")
                a("s_mov_b32 s93, 0"); a("s_mov_b64 exec, 0xff"); a("s_waitcnt vmcnt(0)")
                a.label("L_PCHK")
                a(f"v_and_b32 v{aUB}, v{aUB}, v{aUB+1}"); a(f"v_and_b32 v{aUB+2}, v{aUB+2}, v{aUB+3}"); a(f"v_and_b32 v{aUB}, v{aUB}, v{aUB+2}")
                a(f"v_cmp_ne_u32 vcc, 1, v{aUB}"); a("s_nop 1"); a("s_cmp_eq_u32 vcc_lo, 0"); a("s_cbranch_scc1 L_PCHK_D")
                a(f"buffer_load_dwordx4 v[{aUB}:{aUB+3}], v{aUB+4}, s[12:15], 0 offen offset:128 sc1"); a("s_waitcnt vmcnt(0)")
                a("s_add_u32 s93, s93, 1"); a("s_cmp_lt_u32 s93, 0x40000"); a("s_cbranch_scc1 L_PCHK")
                a.label("L_PCHK_D"); a("s_mov_b64 exec, -1")
                a.label("L_PCHK_OK")
            if i==EB: seg1.flush()
            if i==GB: fc.flush(); poll_check()
            a("s_barrier")
            stamp(a,32+i)
        if s+1<28: readsA(s+1)
        elif s+1<56: readsB(s+1)
        if A_: mf(aUA,F+4,XF+4*s,s==0)
        else: mf(aUB,F+4,XF+4*sb,sb==0)
        if bar:
            if i==0: dma_xb(2)
            if i==0: dma_w(4)
            if i>=1 and i+4<=27: dma_w(i+4)
            if i%2==0 and 2<=i and i//2+2<=6: dma_xb(i//2+2)
            if i==2: param_loads()
            if i==10:
                a("s_cmp_lg_u32 s66, 7"); a("s_cbranch_scc1 L_NC"); a("s_mov_b64 exec, 0xff")
                a(f"v_lshlrev_b32 v{aUB+4}, 4, v1"); a(f"buffer_load_dwordx4 v[{aUB}:{aUB+3}], v{aUB+4}, s[12:15], 0 offen offset:128 sc1")
                a("s_mov_b64 exec, -1"); a.label("L_NC")
            if i==11: fold_dma()
            if i==12:
                p2_setup()
                a("s_mul_i32 s79, s65, 8192"); a(f"s_add_u32 s79, s79, {T_OFF}")
                a("s_mul_i32 s95, s66, 2304"); a(f"s_add_u32 s95, s95, {TRS}")
            if 14<=i<14+NE: early(i-14)
            if i==PI: poll_issue()
        if A_:
            if s>=10: fa.run(6)
            mf(aS,XF+4*s,F+8,s==0)
        else:
            if i<EB or (i==EB and not bar): seg1.run(FB)
            elif i<GB or (i==GB and not bar): fc.run(2*FB,sb)
            else: fd.run(2*FB)
    assert not fa.q
    stamp(a,3)
    fd.flush()
    stamp(a,4)
    fe=Fill(a)
    ffn_prog(fe, aGB, aUB, 180, [176,177,178,179], [2,168], 1, None)
    fe.do(a_store(180,1)); fe.flush()
    stamp(a,5)
    a("s_waitcnt vmcnt(0)")
    a("s_barrier")
    stamp(a,8)
    a("s_cmp_lg_u32 s66, 7"); a("s_cbranch_scc1 L_NOFLAG")
    a("s_lshl_b32 s3, s64, 8"); a("s_lshl_b32 s4, s65, 2"); a("s_add_u32 s3, s3, s4"); a(f"s_add_u32 s3, s3, {FL_OFF}")
    a("v_mov_b32 v32, 1"); a("v_mov_b32 v33, 0"); a("s_mov_b64 exec, 1")
    a("buffer_store_dword v32, v33, s[60:63], s3 offen sc0 sc1")
    a("s_mov_b64 exec, 15")
    a("s_lshr_b32 s3, s88, 1"); a("s_lshl_b32 s3, s3, 8"); a(f"s_add_u32 s3, s3, {FL_OFF}")
    a(f"v_lshlrev_b32 v33, 4, v1"); a("s_mov_b32 s93, 0")
    a("v_cmp_eq_u32 s[6:7], 3, v1")
    a.label("L_FPOLL")
    a("buffer_load_dwordx4 v[36:39], v33, s[60:63], s3 offen sc0 sc1")
    a("s_waitcnt vmcnt(0)")
    a("v_cndmask_b32 v38, v38, 1, s[6:7]"); a("v_cndmask_b32 v39, v39, 1, s[6:7]")
    a("v_and_b32 v36, v36, v37"); a("v_and_b32 v38, v38, v39"); a("v_and_b32 v36, v36, v38")
    a("v_cmp_ne_u32 vcc, 1, v36"); a("s_add_u32 s93, s93, 1"); a("s_nop 0")
    a("s_cmp_eq_u32 vcc_lo, 0"); a("s_cbranch_scc1 L_FOK")
    a("s_cmp_lt_u32 s93, 0x40000"); a("s_cbranch_scc1 L_FPOLL")
    a.label("L_FOK"); a("s_mov_b64 exec, -1")
    a.label("L_NOFLAG")
    srd(a,68,42,43,2048*448*4)
    EX=10; oF2=8
    a(f"v_lshlrev_b32 v{oF2}, 4, v1")
    a(f"v_and_b32 v24, 15, v1"); a("s_lshl_b32 s3, s89, 6"); a(f"v_lshl_add_u32 v24, v24, 2, s3"); a(f"v_lshlrev_b32 v25, 1, v24")
    a(f"global_load_dwordx2 v[30:31], v25, s[32:33]")
    for g in range(2):
        a(f"v_lshrrev_b32 v26, 4, v1"); a(f"v_lshlrev_b32 v26, 4, v26"); a(f"s_lshl_b32 s3, s66, 1"); a(f"s_add_u32 s3, s3, {g}"); a(f"v_add_u32 v26, s3, v26")
        a(f"v_and_b32 v27, 31, v26"); tau(a,28,27,29); a(f"v_and_b32 v29, 32, v26"); a("v_or_b32 v28, v28, v29")
        a("s_lshl_b32 s3, s88, 6"); a("v_add_u32 v28, s3, v28"); a("v_mul_u32_u24 v28, 896, v28"); a("v_add_u32 v28, v28, v25")
        a(f"buffer_load_dwordx2 v[{EX+6*g}:{EX+6*g+1}], v28, s[8:11], 0 offen")
        a(f"v_lshlrev_b32 v{22+g}, 1, v28")
        a("v_add_u32 v26, s3, v26"); a("v_lshlrev_b32 v26, 2, v26")
        a(f"s_mov_b32 s4, {STM_OFF}"); a(f"s_mov_b32 s5, {STR_OFF}"); a(f"s_mov_b32 s6, {STD_OFF}")
        a(f"buffer_load_dword v{EX+6*g+2}, v26, s[60:63], s4 offen sc1"); a(f"buffer_load_dword v{EX+6*g+3}, v26, s[60:63], s5 offen sc1")
        a(f"buffer_load_dword v{EX+6*g+4}, v26, s[60:63], s6 offen sc1")
    T=[208,216]
    def tterm():
        a("v_lshlrev_b32 v24, 16, v30"); a("v_and_b32 v25, 0xffff0000, v30"); a("v_lshlrev_b32 v26, 16, v31"); a("v_and_b32 v27, 0xffff0000, v31")
        for g in range(2):
            xr=EX+6*g; m=xr+2; r=xr+3; dn=xr+4; Tg=T[g]; K=range(4)
            a(f"v_lshlrev_b32 v{Tg}, 16, v{xr}"); a(f"v_and_b32 v{Tg+1}, 0xffff0000, v{xr}")
            a(f"v_lshlrev_b32 v{Tg+2}, 16, v{xr+1}"); a(f"v_and_b32 v{Tg+3}, 0xffff0000, v{xr+1}")
            for k in K: a(f"v_sub_f32 v{Tg+4+k}, v{Tg+k}, v{m}")
            for k in K: a(f"v_cvt_pk_bf16_f32 v{Tg+4+k}, 0, v{Tg+4+k}")
            for k in K: a(f"v_mul_f32 v{224+k}, v{Tg+4+k}, v{r}")
            for k in K: a(f"v_fma_f32 v{Tg+4+k}, -v{224+k}, v{dn}, v{Tg+4+k}")
            for k in K: a(f"v_fma_f32 v{Tg+4+k}, v{Tg+4+k}, v{r}, v{224+k}")
            for k in K: a(f"v_cvt_pk_bf16_f32 v{Tg+4+k}, 0, v{Tg+4+k}")
            for k in K: a(f"v_mul_f32 v{Tg+4+k}, v{Tg+4+k}, v{24+k}")
            for k in K: a(f"v_cvt_pk_bf16_f32 v{Tg+4+k}, 0, v{Tg+4+k}")
            a(f"v_mul_f32 v{28+g}, v{r}, v{r}")
    AF=[32,40]; ACC=[48,64,80,96]; BF=112
    def mainloop(role):
        D = 11 if role=="F" else 12
        a.vm=["pre"]*9; a.lg=[]
        def dW(s):
            if role=="F": dmaF(s); a.vm_issue(("w",s)); a.vm_issue(("w",s))
            else: dmaS(s//4,s%4); a.vm_issue(("w",(s//4)*4)); a.vm_issue(("w",(s//4)*4))
        for s in range(NE,D): dW(s)
        if role=="F":
            a("s_lshl_b32 s3, s88, 1"); a("s_mul_i32 s3, s3, 112"); a("s_mul_i32 s4, s66, 28"); a("s_add_u32 s3, s3, s4")
            a("s_lshl_b32 s3, s3, 10"); a(f"s_add_u32 s73, s3, {A_OFF}"); TT=112*1024
        else:
            a("s_lshl_b32 s3, s88, 1"); a("s_mul_i32 s3, s3, 56"); a("s_sub_u32 s4, s66, 4"); a("s_mul_i32 s4, s4, 28"); a("s_add_u32 s3, s3, s4")
            a("s_lshl_b32 s3, s3, 10"); a(f"s_add_u32 s73, s3, {H_OFF}"); TT=56*1024
            a("s_sub_u32 s3, s94, s90")
            for ks in range(4): a(f"v_add_u32 v{2+ks}, s3, v{rA[ks]}")
            a("s_setprio 1")
        a("s_barrier")
        stamp(a,9)
        def ld_frag(s):
            b=BF+(s%12)*8
            if s%4==0: a(f"s_add_u32 s75, s73, {s*1024}"); a(f"s_add_u32 s76, s75, {TT}")
            a(f"buffer_load_dwordx4 v[{b}:{b+3}], v{oF2}, s[60:63], s75 offen offset:{(s%4)*1024} sc1"); a.vm_issue(("b",s))
            a(f"buffer_load_dwordx4 v[{b+4}:{b+7}], v{oF2}, s[60:63], s76 offen offset:{(s%4)*1024} sc1"); a.vm_issue(("b",s))
        def reads(s):
            F=AF[s&1]
            if role=="F":
                k=s%11; o=k*2048 if k<8 else (k-8)*2048; rb=0 if k<8 else 2
                for dt in range(2):
                    a(f"ds_read_b64_tr_b16 v[{F+4*dt}:{F+4*dt+1}], v{rA[rb+dt]} offset:{o}"); a.lg_issue(s)
                    a(f"ds_read_b64_tr_b16 v[{F+4*dt+2}:{F+4*dt+3}], v{rA[rb+dt]} offset:{o+1024}"); a.lg_issue(s)
            else:
                c3=(s//4)%3; reg = rA[s%4] if c3<2 else 2+s%4; o = c3*8192 if c3<2 else 0
                for dt in range(2):
                    a(f"ds_read_b128 v[{F+4*dt}:{F+4*dt+3}], v{reg} offset:{o+dt*4096}"); a.lg_issue(s)
        nxt=[0]
        def more(n,lim):
            for _ in range(n):
                if nxt[0]<28 and nxt[0]<lim: ld_frag(nxt[0]); nxt[0]+=1
        more(4,28)
        a.vm_wait("pre"); tterm()
        wtag = (lambda s: ("w",s)) if role=="F" else (lambda s: ("w",(s//4)*4))
        reads(0)
        for s in range(28):
            F=AF[s&1]; b=BF+(s%12)*8
            if s<27: a.vm_wait(wtag(s+1)); reads(s+1)
            a.vm_wait(("b",s)); a.lg_wait(s)
            if s==0: stamp(a,10)
            for dt in range(2):
                for tt in range(2):
                    d=ACC[dt*2+tt]; c="0" if s==0 else f"v[{d}:{d+15}]"
                    a(f"v_mfma_f32_32x32x16_bf16 v[{d}:{d+15}], v[{F+4*dt}:{F+4*dt+3}], v[{b+4*tt}:{b+4*tt+3}], {c}")
            more(2, s+1+DFR)
            if role=="F":
                if s+D<28: dW(s+D)
            else:
                if s>=3 and s-3+12<28: dW(s-3+12)
        stamp(a,11)
        a(f"v_and_b32 v2, 31, v1"); a(f"v_lshrrev_b32 v3, 5, v1"); a("v_and_b32 v4, 15, v1"); a("v_xor_b32 v3, v3, v4")
        a(f"v_lshlrev_b32 v3, 4, v3"); a(f"v_lshl_add_u32 v2, v2, 8, v3"); a(f"v_add_u32 v2, s90, v2")
        for cq in range(8):
            a(f"v_xor_b32 v{228+cq}, {cq*32}, v2")
        for dt in range(2):
            for tt in range(2):
                d=ACC[dt*2+tt]
                for q in range(4):
                    a(f"ds_write_b128 v{228+4*dt+q}, v[{d+4*q}:{d+4*q+3}] offset:{tt*8192}")
        a("s_waitcnt lgkmcnt(0)")
        a("s_branch L_FIN")
    a("s_cmp_ge_u32 s66, 6"); a("s_cbranch_scc1 L_IDLE")
    a("s_cmp_ge_u32 s66, 4"); a("s_cbranch_scc1 L_SROLE")
    mainloop("F")
    a.label("L_SROLE"); mainloop("S")
    a.label("L_IDLE")
    a("s_barrier"); a("s_waitcnt vmcnt(0)"); tterm()
    a.label("L_FIN")
    a("s_barrier")
    stamp(a,12)
    a.lg=[]
    PB=48
    for g in range(2):
        a(f"s_lshl_b32 s3, s66, 1"); a(f"s_add_u32 s3, s3, {g}")
        a(f"v_lshrrev_b32 v2, 4, v1"); a(f"v_lshlrev_b32 v2, 12, v2"); a(f"v_and_b32 v3, 15, v1"); a("v_xor_b32 v3, s3, v3")
        a(f"v_lshl_add_u32 v2, v3, 4, v2"); a("s_lshl_b32 s3, s3, 8"); a(f"v_add_u32 v{4+2*g}, s3, v2"); a(f"v_add_u32 v{5+2*g}, 0x10000, v{4+2*g}")
        for p in range(6):
            r=PB+(g*6+p)*4
            a(f"ds_read_b128 v[{r}:{r+3}], v{4+2*g+(p//4)} offset:{(p%4)*16384}"); a.lg_issue(("p",g))
    for g in range(2):
        a.lg_wait(("p",g)); r=PB+g*24; Tg=T[g]; K=range(4)
        for k in K: a(f"v_add_f32 v{r+k}, v{r+k}, v{r+k+4}")
        for k in K: a(f"v_add_f32 v{r+k+8}, v{r+k+8}, v{r+k+12}")
        for k in K: a(f"v_add_f32 v{r+k+16}, v{r+k+16}, v{r+k+20}")
        for k in K: a(f"v_add_f32 v{r+k}, v{r+k}, v{r+k+8}")
        for k in K: a(f"v_mul_f32 v{r+k}, v{r+k}, v{28+g}")
        for k in K: a(f"v_cvt_pk_bf16_f32 v{r+k}, 0, v{r+k}")
        for k in K: a(f"v_mul_f32 v{r+k+4}, {NLOG2E}, v{r+k}")
        for k in K: a(f"v_exp_f32 v{r+k+4}, v{r+k+4}")
        for k in K: a(f"v_add_f32 v{r+k+16}, v{r+k+16}, v{Tg+4+k}")
        for k in K: a(f"v_add_f32 v{r+k+4}, 1.0, v{r+k+4}")
        for k in K: a(f"v_rcp_f32 v{r+k+4}, v{r+k+4}")
        for k in K: a(f"v_mul_f32 v{r+k}, v{r+k}, v{r+k+4}")
        for k in K: a(f"v_cvt_pk_bf16_f32 v{r+k}, 0, v{r+k}")
        for k in K: a(f"v_fma_f32 v{r+k+8}, v{r+k}, v{r+k+16}, v{Tg+k}")
        a(f"buffer_store_dwordx4 v[{r+8}:{r+11}], v{22+g}, s[68:71], 0 offen")
    if STAMP or DSTAMP: a("s_waitcnt vmcnt(0)")
    stamp(a,13); stamp(a,14,True); stamp_flush(a)
    a("s_endpgm")
    a.label("L_SPARE")
    a("s_sub_u32 s64, s2, 224")
    a(f"v_and_b32 v3, 31, v1"); a(f"v_lshrrev_b32 v2, 5, v1")
    a("s_waitcnt lgkmcnt(0)")
    srd(a,60,46,47,WS_SIZE); srd(a,12,44,45,256)
    a("s_cmp_ge_u32 s66, 4"); a("s_cbranch_scc1 L_SPW")
    srd(a,8,16,17,2048*896)
    a("s_cmp_lt_u32 s64, 16"); a("s_cselect_b32 s56, s22, s24"); a("s_cselect_b32 s57, s23, s25")
    a("s_and_b32 s57, s57, 0xffff"); a(f"s_mov_b32 s58, {448*896}"); a("s_mov_b32 s59, 0x20000")
    XR=40; BR=104; U=136
    for i in range(96): a(f"v_mov_b32 v{XR+i}, 0")
    a("s_lshl_b32 s3, s64, 6"); a("s_lshl_b32 s4, s66, 4"); a("s_add_u32 s65, s3, s4"); a("v_add_u32 v9, s65, v2")
    a("v_mul_u32_u24 v10, 896, v9"); a("v_lshl_add_u32 v10, v3, 4, v10")
    a("s_and_b32 s3, s64, 15"); a("s_mul_i32 s3, s3, 28"); a("s_lshl_b32 s5, s66, 3"); a("s_add_u32 s3, s3, s5")
    a("v_add_u32 v11, s3, v2"); a("v_mul_u32_u24 v12, 896, v11"); a("v_lshl_add_u32 v12, v3, 4, v12")
    a("v_cmp_gt_u32 vcc, 28, v3"); a("s_and_saveexec_b64 s[4:5], vcc"); a("s_mov_b64 s[6:7], exec")
    for it in range(8):
        a(f"s_movk_i32 s3, {it*1792}")
        a(f"buffer_load_dwordx4 v[{XR+8*it}:{XR+8*it+3}], v10, s[8:11], s3 offen")
        a(f"buffer_load_dwordx4 v[{XR+8*it+4}:{XR+8*it+7}], v10, s[8:11], s3 offen offset:448")
    for it in range(4):
        a(f"s_movk_i32 s3, {it*1792}")
        a(f"buffer_load_dwordx4 v[{BR+8*it}:{BR+8*it+3}], v12, s[56:59], s3 offen")
        a(f"buffer_load_dwordx4 v[{BR+8*it+4}:{BR+8*it+7}], v12, s[56:59], s3 offen offset:448")
    a("s_mov_b64 exec, s[4:5]")
    a("s_mov_b32 s70, 0x3f803f80")
    stamp(a,16)
    S=list(range(16,24)); S2=list(range(24,32)); TM=list(range(32,40));
    for half in range(2):
        its=range(4*half,4*half+4)
        a(f"s_waitcnt vmcnt({8+8*(1-half)})")
        for it in its: a(f"v_mov_b32 v{S[it]}, 0")
        for i in range(8):
            for it in its: a(f"v_dot2c_f32_bf16 v{S[it]}, s70, v{XR+8*it+i}")
        for it in its:
            for i in range(8):
                a(f"v_lshlrev_b32 v{U+16*(it%4)+2*i}, 16, v{XR+8*it+i}"); a(f"v_and_b32 v{U+16*(it%4)+2*i+1}, 0xffff0000, v{XR+8*it+i}")
        allreduce32_multi(a,[S[it] for it in its],[TM[it] for it in its])
        for it in its: a(f"v_mul_f32 v{S[it]}, {INV448}, v{S[it]}"); a(f"v_mov_b32 v{S2[it]}, 0")
        a("s_mov_b64 exec, s[6:7]")
        for i in range(16):
            for it in its: a(f"v_sub_f32 v{U+16*(it%4)+i}, v{U+16*(it%4)+i}, v{S[it]}")
            for it in its: a(f"v_fmac_f32 v{S2[it]}, v{U+16*(it%4)+i}, v{U+16*(it%4)+i}")
        a("s_mov_b64 exec, -1"); a.nop(5)
        allreduce32_multi(a,[S2[it] for it in its],[TM[it] for it in its])
    SB=[200,201,202,203]
    a("s_waitcnt vmcnt(0)")
    for it in range(4): a(f"v_mov_b32 v{SB[it]}, 0")
    for i in range(8):
        for it in range(4): a(f"v_dot2c_f32_bf16 v{SB[it]}, s70, v{BR+8*it+i}")
    a.nop(4)
    allreduce32_multi(a,SB,[204,205,206,207])
    for it in range(1,8):
        a(f"v_cmp_eq_u32 vcc, {it}, v3"); a.nop(1)
        a(f"v_cndmask_b32 v{S[0]}, v{S[0]}, v{S[it]}, vcc"); a(f"v_cndmask_b32 v{S2[0]}, v{S2[0]}, v{S2[it]}, vcc")
        if it<4: a(f"v_cndmask_b32 v{SB[0]}, v{SB[0]}, v{SB[it]}, vcc")
    m_,v_=S[0],S2[0]
    a(f"v_mul_f32 v{v_}, {INV448}, v{v_}"); a(f"v_cvt_pk_bf16_f32 v{m_}, 0, v{m_}"); a(f"v_cvt_pk_bf16_f32 v{v_}, 0, v{v_}")
    a(f"v_add_f32 v{v_}, 0x3727c5ac, v{v_}"); a(f"v_cvt_pk_bf16_f32 v{v_}, 0, v{v_}"); a(f"v_sqrt_f32 v{v_}, v{v_}")
    a(f"v_cvt_pk_bf16_f32 v{v_}, 0, v{v_}"); a(f"v_rcp_f32 v{TM[0]}, v{v_}")
    a("v_lshl_add_u32 v207, v3, 1, v9"); a("v_and_b32 v208, 31, v207"); tau_inv(a,209,208,210)
    a("v_and_b32 v207, 0xffffffe0, v207"); a("v_or_b32 v207, v207, v209"); a("v_lshlrev_b32 v207, 2, v207")
    a("v_lshl_add_u32 v208, v3, 1, v11"); a("v_lshlrev_b32 v208, 2, v208")
    a("s_mov_b32 s4, 0xff"); a("s_mov_b32 s5, 0xff"); a("s_mov_b64 exec, s[4:5]")
    a(f"s_mov_b32 s3, {STM_OFF}"); a(f"buffer_store_dword v{m_}, v207, s[60:63], s3 offen sc0 sc1")
    a(f"s_mov_b32 s3, {STR_OFF}"); a(f"buffer_store_dword v{TM[0]}, v207, s[60:63], s3 offen sc0 sc1")
    a(f"s_mov_b32 s3, {STD_OFF}"); a(f"buffer_store_dword v{v_}, v207, s[60:63], s3 offen sc0 sc1")
    a("s_cmp_eq_u32 s66, 3"); a("s_cselect_b32 s4, 3, 15"); a("s_mov_b32 s5, s4"); a("s_mov_b64 exec, s[4:5]")
    a("s_lshr_b32 s3, s64, 4"); a("s_mul_i32 s3, s3, 1792"); a(f"s_add_u32 s3, s3, {CS_OFF+3584*4}")
    a(f"buffer_store_dword v{SB[0]}, v208, s[60:63], s3 offen sc0 sc1")
    a("s_mov_b64 exec, -1")
    stamp(a,18)
    a("s_barrier")
    a("s_branch L_SP6")
    a.label("L_SPW")
    for i in range(4): a(f"v_mov_b32 v{4+i}, 0")
    a("v_subrev_u32 v8, 256, v0"); a("v_cmp_gt_u32 vcc, 232, v8"); a("s_and_saveexec_b64 s[4:5], vcc"); a("s_cbranch_execz L_SP1")
    a("v_lshlrev_b32 v8, 4, v8"); a("s_mul_i32 s3, s64, 3712"); a(f"s_add_u32 s3, s3, {T_OFF}")
    a("buffer_store_dwordx4 v[4:7], v8, s[60:63], s3 offen sc0 sc1")
    a.label("L_SP1"); a("s_mov_b64 exec, s[4:5]")
    a("s_cmp_ge_u32 s64, 28"); a("s_cbranch_scc1 L_SPX")
    a("s_cmp_lt_u32 s66, 6"); a("s_cselect_b32 s48, s36, s38"); a("s_cselect_b32 s49, s37, s39")
    a("s_and_b32 s49, s49, 0xffff"); a(f"s_mov_b32 s50, {448*3584}"); a("s_mov_b32 s51, 0x20000")
    w128_dma_off(a,10,11,12,3584)
    a("s_and_b32 s67, s66, 1"); a(f"s_mul_i32 s3, s67, {224*3584}"); a("s_lshl_b32 s4, s64, 7"); a("s_add_u32 s3, s3, s4"); a("v_add_u32 v10, s3, v10")
    a("s_sub_u32 s90, s66, 4"); a("s_mul_i32 s90, s90, 28672")
    a.vm=[]; a.lg=[]
    for d in range(28):
        a(f"s_add_u32 m0, s90, {d*1024}"); a(f"s_mov_b32 s3, {d*8*3584}")
        a(f"buffer_load_dwordx4 v10, s[48:51], s3 offen lds"); a.vm_issue(d//2)
    w128_rd_off(a,11,12,2)
    a("v_add_u32 v11, s90, v11"); a("v_xor_b32 v12, 64, v11")
    for i in range(4): a(f"v_mov_b32 v{16+i}, 0x3f803f80")
    stamp(a,16)
    for s in range(14):
        F=20+8*(s&1)
        a.vm_wait(s)
        for dt in range(2):
            a(f"ds_read_b64_tr_b16 v[{F+4*dt}:{F+4*dt+1}], v{11+dt} offset:{s*2048}"); a(f"ds_read_b64_tr_b16 v[{F+4*dt+2}:{F+4*dt+3}], v{11+dt} offset:{s*2048+1024}")
        a("s_waitcnt lgkmcnt(0)")
        for dt in range(2):
            d=40+16*dt; c="0" if s==0 else f"v[{d}:{d+15}]"
            a(f"v_mfma_f32_32x32x16_bf16 v[{d}:{d+15}], v[16:19], v[{F+4*dt}:{F+4*dt+3}], {c}")
    a("v_cmp_gt_u32 vcc, 32, v1"); a.nop(12)
    a("v_cndmask_b32 v40, v56, v40, vcc")
    a("v_lshlrev_b32 v13, 2, v1"); a("s_sub_u32 s3, s66, 4"); a("s_lshl_b32 s3, s3, 8"); a(f"s_add_u32 s3, s3, {120*1024}"); a("v_add_u32 v14, s3, v13")
    a("ds_write_b32 v14, v40"); a("s_waitcnt lgkmcnt(0)")
    stamp(a,18)
    a("s_barrier")
    a("s_cmp_lg_u32 s67, 0"); a("s_cbranch_scc1 L_SP6")
    a("ds_read_b32 v41, v14 offset:256"); a("s_waitcnt lgkmcnt(0)"); a("v_add_f32 v40, v40, v41")
    a("s_sub_u32 s3, s66, 4"); a("s_lshr_b32 s3, s3, 1"); a("s_mul_i32 s3, s3, 7168"); a("s_lshl_b32 s4, s64, 8"); a("s_add_u32 s3, s3, s4"); a(f"s_add_u32 s3, s3, {CS_OFF}")
    a(f"buffer_store_dword v40, v13, s[60:63], s3 offen sc0 sc1")
    a("s_branch L_SP6")
    a.label("L_SPX"); a("s_barrier")
    a.label("L_SP6")
    stamp(a,19)
    a("s_waitcnt vmcnt(0)")
    stamp(a,20)
    a("s_barrier")
    a("s_cmp_lg_u32 s66, 0"); a("s_cbranch_scc1 L_SP7")
    a("v_mov_b32 v4, 1"); a("s_lshl_b32 s3, s64, 2"); a("v_mov_b32 v5, s3"); a("s_mov_b64 exec, 1")
    a("buffer_store_dword v4, v5, s[12:15], 0 offen offset:128 sc0 sc1"); a("s_mov_b64 exec, -1")
    a.label("L_SP7")
    stamp(a,13); stamp(a,14,True); stamp_flush(a,True)
    a.label("L_END"); a("s_endpgm")
    return a

def main(out):
    a=gen()
    hdr=open("cdna_kernels/"+NAME+".s.ref").read().split("; Override launch")[0]
    s=hdr+"; @launch grid=(256,1,1) block=(512,1,1) lds=163840\n"
    s+='.amdgcn_target "amdgcn-amd-amdhsa--gfx950"\n.text\n'+a.text()
    s+=f""".section .rodata,"a"
.p2align 6
.amdhsa_kernel {KN}
  .amdhsa_next_free_vgpr 256
  .amdhsa_next_free_sgpr 102
  .amdhsa_accum_offset 256
  .amdhsa_group_segment_fixed_size 0
  .amdhsa_kernarg_size 128
  .amdhsa_user_sgpr_count 2
  .amdhsa_user_sgpr_kernarg_segment_ptr 1
  .amdhsa_system_sgpr_workgroup_id_x 1
  .amdhsa_float_denorm_mode_32 3
.end_amdhsa_kernel
"""
    open(out,"w").write(s)
    print("maxv",a.maxv,"bytes",len(s))
if __name__=="__main__":
    main(sys.argv[1] if len(sys.argv)>1 else "f3.s")
```
